```python
import torch

def _softmax(x, axis=-1):
    return torch.softmax(x, dim=axis)
def _gelu(x):
    return torch.nn.functional.gelu(x, approximate="tanh")
def _silu(x):
    return torch.nn.functional.silu(x)
def _sigmoid(x):
    return torch.sigmoid(x)
def _layernorm(x, axis=-1, eps=1e-5):
    m = x.mean(dim=axis, keepdim=True)
    v = x.var(dim=axis, keepdim=True, unbiased=False)
    return (x - m) / torch.sqrt(v + eps)
def _scatter_add(tgt, idx, src, axis=0):
    return tgt.clone().index_add_(axis, idx, src)
def _segment_sum(src, seg, n):
    out = torch.zeros((n,) + src.shape[1:], dtype=src.dtype)
    return out.index_add_(0, seg, src)
def _pad(x, pw):
    flat = tuple(v for pair in reversed(pw) for v in pair)
    return torch.nn.functional.pad(x, flat)

kernel_name = 'gated_mix__mha_block__dense_activation_relu__prompt'

def setup_inputs():

    _w = (lambda a: (lambda t: t.to(torch.bfloat16) if t.is_floating_point() else t)(torch.as_tensor(a)))
    def _A_setup():
        B, S, D, H = 1, 2048, 640, 32
        return {
            "x": _w((lambda *s: torch.randn(*s, dtype=torch.bfloat16) * 0.05)(B, S, D)),
            "wqkv": _w((lambda *s: torch.randn(*s, dtype=torch.bfloat16) * 0.8)(D, 3 * D)),
            "wo": _w((lambda *s: torch.randn(*s, dtype=torch.bfloat16) * 0.2)(D, D)),
        }
    _A_in = _A_setup()

    def _B_setup():
        B, S, D, Dff = 1, 2048, 640, 1536
        return {
            "x": _w((lambda *s: torch.randn(*s, dtype=torch.bfloat16) * 0.05)(B, S, D)),
            "w1": _w((lambda *s: torch.randn(*s, dtype=torch.bfloat16) * 0.05)(D, Dff)),
            "w2": _w((lambda *s: torch.randn(*s, dtype=torch.bfloat16) * 0.05)(Dff, D)),
        }
    _B_in = _B_setup()

    return {
        "A_x": _A_in["x"],
        "A_wqkv": _A_in["wqkv"],
        "A_wo": _A_in["wo"],
        "B_x": _B_in["x"],
        "B_w1": _B_in["w1"],
        "B_w2": _B_in["w2"],
        "gate_w": _w((lambda *s: torch.randn(*s, dtype=torch.bfloat16) * 0.05)(640) * 16.0),
    }

def reference(A_x, A_wqkv, A_wo, B_x, B_w1, B_w2, gate_w):
    def _A_ref(x, wqkv, wo):
        B, S, D = x.shape
        H = 32
        Dh = D // H
        qkv = (lambda x, *d: x.permute(*d))((x @ wqkv).reshape(B, S, 3, H, Dh), 2, 0, 3, 1, 4)
        q, k, v = qkv[0], qkv[1], qkv[2]
        scores = torch.einsum("bhqd,bhkd->bhqk", q, k) * (Dh ** -0.5)
        p = _softmax(scores, axis=-1)
        o = torch.einsum("bhqk,bhkd->bhqd", p, v)
        return (lambda x, *d: x.permute(*d))(o, 0, 2, 1, 3).reshape(B, S, D) @ wo

    def _B_ref(x, w1, w2):
        h = torch.einsum("bsd,df->bsf", x, w1)
        zero = torch.zeros_like(h)
        h = torch.maximum(h, zero)
        return torch.einsum("bsf,fd->bsd", h, w2)

    x = A_x
    g = _sigmoid((x * gate_w).sum(-1, keepdims=True))
    a = _A_ref(x, A_wqkv, A_wo)
    b = _B_ref(x, B_w1, B_w2)
    return g * a + (1 - g) * b
```

```python
class Asm:
    def __init__(self):
        self.lines = []
    def __call__(self, s=""):
        for l in s.split("\n"):
            l = l.strip()
            if l == "": continue
            if l.endswith(":") or l.startswith("."):
                self.lines.append(l)
            else:
                self.lines.append("  " + l)
    def c(self, s):
        self.lines.append("  ; " + s)
    def text(self):
        return "\n".join(self.lines) + "\n"

def vr(a, n=1):
    return f"v{a}" if n == 1 else f"v[{a}:{a+n-1}]"
def sr(a, n=1):
    return f"s{a}" if n == 1 else f"s[{a}:{a+n-1}]"

def interleave(main, fill, every=1, start=0):
    out = []; fi = 0
    for i, m in enumerate(main):
        out.append(m)
        if i >= start and (i - start) % every == 0 and fi < len(fill):
            out.append(fill[fi]); fi += 1
    out += fill[fi:]
    return out

TTS = 40960
QB = 0x0000000
KB = 0x0280000
VB = 0x0500000
HB = 0x0780000
OB = 0x0D80000
GB = 0x1000000
W2F = 0x1010000
WOF = 0x11F0000
WS_USED = 0x1400000
QSCALE = 1.4426950408889634 / (20 ** 0.5)

import struct
def f2u(x):
    return struct.unpack("<I", struct.pack("<f", x))[0]

def srd(a, base, ptr, nbytes):
    a(f"s_mov_b32 s{base}, s{ptr}")
    a(f"s_mov_b32 s{base+1}, s{ptr+1}")
    a(f"s_mov_b32 s{base+2}, {nbytes:#x}")
    a(f"s_mov_b32 s{base+3}, 0x20000")

def kdesc(name, vgpr=256, sgpr=96):
    return f""".section .rodata,"a"
.p2align 6
.amdhsa_kernel {name}
  .amdhsa_next_free_vgpr {vgpr}
  .amdhsa_next_free_sgpr {sgpr}
  .amdhsa_accum_offset {min(256,(vgpr+3)//4*4)}
  .amdhsa_group_segment_fixed_size 0
  .amdhsa_kernarg_size 80
  .amdhsa_user_sgpr_count 2
  .amdhsa_user_sgpr_kernarg_segment_ptr 1
  .amdhsa_system_sgpr_workgroup_id_x 1
.end_amdhsa_kernel
"""
def khead(name):
    return f""".text
.globl {name}
.p2align 8
.type {name},@function
{name}:
"""
```

```python
from asm import *
STG = 45056
PFL = 3 * STG
K1_LDS = PFL + 4 * 5120

def gen_k1(name):
    a = Asm()
    L = lambda s: f"L_{name}_{s}"
    sX, sWQ, sWO, sW1, sW2, sGW, sWS = 4, 6, 8, 12, 14, 16, 18
    rX, rW, rWS, rPF, rG = 20, 24, 28, 32, 36
    sWv, sRB, sCG, sT, sStart, sStride, sCol = 40, 41, 42, 43, 44, 45, 46
    t0, t1, t2, t3 = 48, 49, 50, 51
    a(f"""
    s_cmp_ge_u32 s2, 256
    s_cbranch_scc1 {L('end')}
    s_load_dwordx4 s[4:7], s[0:1], 0
    s_load_dwordx2 s[8:9], s[0:1], 16
    s_load_dwordx4 s[12:15], s[0:1], 32
    s_load_dwordx2 s[16:17], s[0:1], 48
    s_load_dwordx2 s[18:19], s[0:1], 72
    v_lshrrev_b32 v1, 6, v0
    v_and_b32 v0, 63, v0
    s_and_b32 s{t0}, s2, 7
    v_readfirstlane_b32 s{sWv}, v1
    s_lshr_b32 s{t1}, s2, 3
    s_and_b32 s{t2}, s{t0}, 1
    s_lshl_b32 s{t2}, s{t2}, 3
    s_and_b32 s{t3}, s{t1}, 7
    s_add_u32 s{sRB}, s{t2}, s{t3}
    s_lshr_b32 s{t2}, s{t0}, 1
    s_lshl_b32 s{t2}, s{t2}, 2
    s_lshr_b32 s{t3}, s{t1}, 3
    s_add_u32 s{sCG}, s{t2}, s{t3}
    """)
    a.c("type: 0 Q, 1 K, 2 V, 3 H; start column block; weight row stride; column byte offset")
    a(f"""
    s_mul_i32 s{sT}, s{sCG}, 43
    s_lshr_b32 s{sT}, s{sT}, 7
    s_min_u32 s{sT}, s{sT}, 3
    s_mul_i32 s{t0}, s{sT}, 3
    s_sub_u32 s{t0}, s{sCG}, s{t0}
    s_mul_i32 s{t0}, s{t0}, 7
    s_cmp_eq_u32 s{sT}, 3
    s_cselect_b32 s{t1}, 41, 13
    s_mov_b32 s{sStride}, 3840
    s_cmov_b32 s{sStride}, 3072
    s_cselect_b32 s{t2}, 0, s{sT}
    s_min_u32 s{sStart}, s{t0}, s{t1}
    s_mul_i32 s{t2}, s{t2}, 1280
    s_lshl_b32 s{t3}, s{sStart}, 6
    s_add_u32 s{sCol}, s{t2}, s{t3}
    s_waitcnt lgkmcnt(0)
    """)
    srd(a, rWS, sWS, WS_USED)
    a(f"""
    s_cmp_ge_u32 s{sWv}, 4
    s_cbranch_scc1 {L('loader')}
    """)
    XF, WF, ACC = 16, 48, 104
    vXA0, vXA1, vWe, vWo, vWl = 2, 3, 4, 5, 6
    sTR, sFC, sDelta, sCnt, sSlot = 52, 53, 54, 55, 56
    a(f"""
    s_lshr_b32 s{sTR}, s{sWv}, 1
    s_and_b32 s{sFC}, s{sWv}, 1
    v_and_b32 v8, 15, v0
    v_lshrrev_b32 v9, 4, v0
    v_lshrrev_b32 v10, 1, v8
    v_xor_b32 v10, v10, v9
    v_lshlrev_b32 v10, 4, v10
    v_lshl_add_u32 v10, v8, 7, v10
    s_lshl_b32 s{t0}, s{sTR}, 13
    v_add_u32 v{vXA0}, s{t0}, v10
    v_xor_b32 v{vXA1}, 64, v{vXA0}
    v_bfe_u32 v10, v0, 2, 2
    v_lshl_add_u32 v10, v9, 3, v10
    v_mul_u32_u24 v10, 448, v10
    v_and_b32 v11, 3, v0
    v_lshl_add_u32 v10, v11, 3, v10
    v_and_b32 v11, 1, v9
    v_lshlrev_b32 v11, 5, v11
    s_lshl_b32 s{t0}, s{sFC}, 8
    s_add_u32 s{t0}, s{t0}, 16384
    v_add_u32 v12, s{t0}, v10
    v_add_u32 v{vWe}, v12, v11
    v_sub_u32 v{vWo}, v12, v11
    s_cmp_eq_u32 s{sFC}, 0
    s_cselect_b32 s{t0}, 1, -1
    s_mov_b32 s{t1}, {16384+224}
    s_cmov_b32 s{t1}, {16384+192}
    v_mul_i32_i24 v11, s{t0}, v11
    v_add3_u32 v{vWl}, v10, v11, s{t1}
    """)
    for i in range(112):
        a(f"v_mov_b32 v{ACC+i}, 0")
    def reads(buf, kk):
        r = []
        for tb in range(4):
            r.append(f"ds_read_b128 {vr(XF+16*buf+4*tb,4)}, v{vXA1 if kk else vXA0} offset:{tb*2048}")
        for aa in range(7):
            for j in range(2):
                ad = vWl if aa == 6 else (vWo if aa & 1 else vWe)
                off = kk*14336 + j*1792 + (0 if aa == 6 else aa*32)
                r.append(f"ds_read_b64_tr_b16 {vr(WF+28*buf+4*aa+2*j,2)}, v{ad} offset:{off}")
        return [r[0], r[4], r[5], r[1], r[2], r[3]] + r[6:]
    def mfmas(buf, vtype):
        m = []
        for aa in range(7):
            for tb in range(4):
                w = vr(WF+28*buf+4*aa, 4); x = vr(XF+16*buf+4*tb, 4); d = vr(ACC+16*aa+4*tb, 4)
                A, B = (x, w) if vtype else (w, x)
                m.append(f"v_mfma_f32_16x16x32_bf16 {d}, {A}, {B}, {d}")
        return m
    a(f"""
    s_mov_b32 s{sCnt}, 10
    s_mov_b32 s{sSlot}, 0
    s_barrier
    """)
    for x in reads(0, 0): a(x)
    a(f"""
    s_cmp_eq_u32 s{sT}, 2
    s_cbranch_scc1 {L('loopv')}
    """)
    for vtype in (0, 1):
        lab = L('loopv' if vtype else 'loopn')
        a(f"{lab}:")
        a("s_waitcnt lgkmcnt(0)")
        for x in interleave(mfmas(0, vtype), reads(1, 1)): a(x)
        a(f"""
        s_add_u32 s{sSlot}, s{sSlot}, 1
        s_cmp_eq_u32 s{sSlot}, 3
        s_mov_b32 s{sDelta}, {STG}
    s_cmov_b32 s{sDelta}, {-2*STG}
        s_cselect_b32 s{sSlot}, 0, s{sSlot}
        s_sub_u32 s{sCnt}, s{sCnt}, 1
        s_waitcnt lgkmcnt(0)
        s_barrier
        """)
        upd = [f"v_add_u32 v{r}, s{sDelta}, v{r}" for r in (vXA0, vWe, vWo, vWl, vXA1)]
        m = mfmas(1, vtype)
        a(m[0])
        for x in upd: a(x)
        for x in interleave(m[1:], reads(0, 0)): a(x)
        a(f"""
        s_cmp_lg_u32 s{sCnt}, 0
        s_cbranch_scc1 {lab}
        """)
        if vtype == 0:
            a(f"s_branch {L('epi')}")
    a(f"{L('epi')}:")
    TMP = 216
    sBase, sUnit, sScale = 57, 58, 60
    a(f"""
    s_cmp_eq_u32 s{sT}, 3
    s_cbranch_scc1 {L('epih')}
    """)
    a.c("Q/K/V: base = T*0x280000 + TT*40960 + FB*unit")
    a(f"""
    s_cmp_eq_u32 s{sT}, 2
    s_mov_b32 s{sUnit}, 1024
    s_cmov_b32 s{sUnit}, 256
    s_mov_b32 s{t0}, 256
    s_cmov_b32 s{t0}, 10240
    s_cmp_eq_u32 s{sT}, 0
    s_cselect_b32 s{sScale}, {f2u(QSCALE):#x}, 1.0
    v_mul_u32_u24 v10, s{t0}, v9
    v_lshl_add_u32 v10, v8, 4, v10
    s_mov_b32 s{sScale+1}, s{sScale}
    s_mul_i32 s{sBase}, s{sT}, {KB:#x}
    s_lshl_b32 s{t0}, s{sRB}, 2
    s_lshl_b32 s{t1}, s{sTR}, 1
    s_add_u32 s{t0}, s{t0}, s{t1}
    s_mul_i32 s{t0}, s{t0}, {TTS}
    s_add_u32 s{sBase}, s{sBase}, s{t0}
    s_lshl_b32 s{t0}, s{sStart}, 1
    s_add_u32 s{t2}, s{t0}, 6
    s_add_u32 s{t2}, s{t2}, s{sFC}
    s_mul_i32 s{t2}, s{t2}, s{sUnit}
    s_add_u32 s{t2}, s{t2}, s{sBase}
    s_lshl_b32 s{t1}, s{sFC}, 3
    s_add_u32 s{t0}, s{t0}, s{t1}
    s_mul_i32 s{t0}, s{t0}, s{sUnit}
    s_add_u32 s{t0}, s{t0}, s{sBase}
    v_add_u32 v11, {TTS}, v10
    """)
    n = 0
    for aa in range(7):
        for tl in range(2):
            src = ACC + 16*aa + 8*tl
            T = TMP + 4*(n % 4); n += 1
            for q in range(4):
                a(f"v_pk_mul_f32 {vr(src+2*q,2)}, {vr(src+2*q,2)}, s[{sScale}:{sScale+1}]")
            for q in range(4):
                a(f"v_cvt_pk_bf16_f32 v{T+q}, v{src+2*q}, v{src+2*q+1}")
            so = t2 if aa == 6 else t0
            a(f"buffer_store_dwordx4 {vr(T,4)}, v{11 if tl else 10}, s[{rWS}:{rWS+3}], s{so} offen")
        if aa < 5:
            a(f"s_add_u32 s{t0}, s{t0}, s{sUnit}")
    a(f"s_endpgm")
    a(f"{L('epih')}:")
    a.c("H: base = HB + TT*98304 + p*2048 + g*512 + token*16")
    a(f"""
    v_lshlrev_b32 v10, 9, v9
    v_lshl_add_u32 v10, v8, 4, v10
    s_lshl_b32 s{t0}, s{sRB}, 2
    s_lshl_b32 s{t1}, s{sTR}, 1
    s_add_u32 s{t0}, s{t0}, s{t1}
    s_mul_i32 s{t0}, s{t0}, 98304
    s_add_u32 s{sBase}, s{t0}, {HB:#x}
    s_add_u32 s{t2}, s{sStart}, 3
    s_lshl_b32 s{t2}, s{t2}, 11
    s_lshl_b32 s{t1}, s{sFC}, 3
    s_add_u32 s{t2}, s{t2}, s{t1}
    s_add_u32 s{t2}, s{t2}, s{sBase}
    s_lshl_b32 s{t1}, s{sFC}, 2
    s_add_u32 s{t0}, s{sStart}, s{t1}
    s_lshl_b32 s{t0}, s{t0}, 11
    s_add_u32 s{t0}, s{t0}, s{sBase}
    v_add_u32 v11, 98304, v10
    """)
    n = 0
    for pa in range(4):
        for tb in range(4):
            T = TMP + 4*(n % 4); n += 1
            s0 = ACC + 32*pa + 4*tb
            srcs = [s0, s0+2] + ([s0+16, s0+18] if pa < 3 else [])
            for q, s in enumerate(srcs):
                a(f"v_cvt_pk_bf16_f32 v{T+q}, v{s}, v{s+1}")
            for q, s in enumerate(srcs):
                a(f"v_pk_max_i16 v{T+q}, v{T+q}, 0")
            va = 11 if tb >= 2 else 10
            off = 256 if tb & 1 else 0
            if pa < 3:
                a(f"buffer_store_dwordx4 {vr(T,4)}, v{va}, s[{rWS}:{rWS+3}], s{t0} offen offset:{off}")
            else:
                a(f"buffer_store_dwordx2 {vr(T,2)}, v{va}, s[{rWS}:{rWS+3}], s{t2} offen offset:{off}")
        if pa < 2:
            a(f"s_add_u32 s{t0}, s{t0}, 2048")
    a("s_endpgm")
    a(f"{L('loader')}:")
    sLW, sOX, sOW, sStep, sMX, sMW, sU, sR0, sRJ, sRH, sDst = 52, 53, 54, 55, 56, 57, 58, 59, 60, 61, 62
    VX, VW, VP = 16, 20, 28
    a(f"s_sub_u32 s{sLW}, s{sWv}, 4")
    srd(a, rX, sX, 2048*1280)
    a(f"""
    s_cmp_eq_u32 s{sT}, 3
    s_cselect_b32 s{rW}, s{sW1}, s{sWQ}
    s_cselect_b32 s{rW+1}, s{sW1+1}, s{sWQ+1}
    s_mov_b32 s{rW+2}, {640*3840}
    s_cmov_b32 s{rW+2}, {640*3072}
    s_mov_b32 s{rW+3}, 0x20000
    s_lshl_b32 s{t0}, s{sRB}, 7
    s_lshl_b32 s{t1}, s{sLW}, 5
    s_add_u32 s{t0}, s{t0}, s{t1}
    s_mul_i32 s{sOX}, s{t0}, 1280
    s_lshl_b32 s{t0}, s{sLW}, 4
    s_mul_i32 s{t0}, s{t0}, s{sStride}
    s_add_u32 s{sOW}, s{t0}, s{sCol}
    s_lshl_b32 s{sStep}, s{sStride}, 6
    s_lshl_b32 s{sMX}, s{sLW}, 12
    s_mul_i32 s{sMW}, s{sLW}, 7168
    s_add_u32 s{sMW}, s{sMW}, 16384
    v_lshrrev_b32 v1, 3, v0
    v_mul_u32_u24 v1, 1280, v1
    v_and_b32 v2, 7, v0
    v_lshrrev_b32 v3, 4, v0
    v_xor_b32 v2, v2, v3
    v_lshl_add_u32 v{VX}, v2, 4, v1
    v_xor_b32 v2, 4, v2
    v_lshl_add_u32 v{VX+1}, v2, 4, v1
    v_add_u32 v{VX+1}, {8*1280}, v{VX+1}
    v_add_u32 v{VX+2}, {16*1280}, v{VX}
    v_add_u32 v{VX+3}, {16*1280}, v{VX+1}
    """)
    for i in range(7):
        a(f"""
        v_add_u32 v1, {64*i}, v0
        v_mul_u32_u24 v2, 2341, v1
        v_lshrrev_b32 v2, 16, v2
        v_mul_u32_u24 v3, 28, v2
        v_sub_u32 v3, v1, v3
        v_bfe_u32 v4, v2, 3, 1
        v_lshlrev_b32 v4, 1, v4
        v_xor_b32 v3, v3, v4
        v_mul_u32_u24 v2, s{sStride}, v2
        v_lshl_add_u32 v{VW+i}, v3, 4, v2
        """)
    def issue(slot):
        a(f"s_add_u32 m0, s{sMX}, {slot*STG}")
        for i in range(4):
            if i: a("s_add_u32 m0, m0, 1024")
            else: a("s_nop 0")
            if i: a("s_nop 0")
            a(f"buffer_load_dwordx4 v{VX+i}, s[{rX}:{rX+3}], s{sOX} offen lds")
        a(f"s_add_u32 m0, s{sMW}, {slot*STG}")
        for i in range(7):
            if i: a("s_add_u32 m0, m0, 1024")
            a("s_nop 0")
            a(f"buffer_load_dwordx4 v{VW+i}, s[{rW}:{rW+3}], s{sOW} offen lds")
        a(f"s_add_u32 s{sOX}, s{sOX}, 128")
        a(f"s_add_u32 s{sOW}, s{sOW}, s{sStep}")
    for s in range(3): issue(s)
    a.c("extras: pre-format unit U = lw*256 + wg ; gate rows")
    a(f"""
    s_lshl_b32 s{sU}, s{sLW}, 8
    s_add_u32 s{sU}, s{sU}, s2
    s_cmp_lt_u32 s{sU}, 384
    s_cselect_b32 s{rPF}, s{sW2}, s{sWO}
    s_cselect_b32 s{rPF+1}, s{sW2+1}, s{sWO+1}
    s_mov_b32 s{rPF+2}, {640*1280}
    s_cmov_b32 s{rPF+2}, {1536*1280}
    s_mov_b32 s{rPF+3}, 0x20000
    s_cbranch_scc0 {L('pfwo')}
    s_lshr_b32 s{t0}, s{sU}, 2
    s_lshr_b32 s{t1}, s{t0}, 1
    s_lshl_b32 s{t1}, s{t1}, 5
    s_and_b32 s{t2}, s{t0}, 1
    s_lshl_b32 s{t2}, s{t2}, 3
    s_add_u32 s{sR0}, s{t1}, s{t2}
    s_mov_b32 s{sRJ}, 16
    s_mov_b32 s{sRH}, 4
    s_and_b32 s{t3}, s{sU}, 3
    s_mul_i32 s{t1}, s{t3}, 96
    s_add_u32 s{t1}, s{t1}, s{t0}
    s_mul_i32 s{sDst}, s{t1}, 5120
    s_add_u32 s{sDst}, s{sDst}, {W2F:#x}
    s_branch {L('pfgo')}
    {L('pfwo')}:
    s_sub_u32 s{t0}, s{sU}, 384
    s_and_b32 s{t3}, s{t0}, 3
    s_lshr_b32 s{t0}, s{t0}, 2
    s_mul_i32 s{t1}, s{t0}, 20
    s_mul_i32 s{t2}, s{t0}, 80
    s_sub_u32 s{t2}, s{t2}, {32*80-16}
    s_cmp_lt_u32 s{t0}, 32
    s_cselect_b32 s{sR0}, s{t1}, s{t2}
    s_cselect_b32 s{sRJ}, 8, 20
    s_cselect_b32 s{sRH}, 4, 40
    s_mul_i32 s{t1}, s{t3}, 40
    s_add_u32 s{t1}, s{t1}, s{t0}
    s_mul_i32 s{sDst}, s{t1}, 5120
    s_add_u32 s{sDst}, s{sDst}, {WOF:#x}
    {L('pfgo')}:
    s_mul_i32 s{sR0}, s{sR0}, 1280
    s_mul_i32 s{t3}, s{t3}, 320
    s_add_u32 s{sR0}, s{sR0}, s{t3}
    s_cmp_lt_u32 s{sU}, 544
    s_cselect_b32 s{sR0}, s{sR0}, 0x10000000
    s_mul_i32 s{t0}, s{sLW}, 5120
    s_add_u32 m0, s{t0}, {PFL}
    """)
    for i in range(5):
        a(f"""
        v_add_u32 v1, {64*i}, v0
        v_mul_u32_u24 v2, 3277, v1
        v_lshrrev_b32 v2, 16, v2
        v_mul_u32_u24 v3, 20, v2
        v_sub_u32 v3, v1, v3
        v_lshrrev_b32 v4, 3, v2
        v_mul_u32_u24 v4, s{sRJ}, v4
        v_bfe_u32 v5, v2, 2, 1
        v_mul_u32_u24 v5, s{sRH}, v5
        v_and_b32 v2, 3, v2
        v_add3_u32 v2, v2, v4, v5
        v_mul_u32_u24 v2, 1280, v2
        v_lshl_add_u32 v{VP}, v3, 4, v2
        buffer_load_dwordx4 v{VP}, s[{rPF}:{rPF+3}], s{sR0} offen lds
        s_add_u32 m0, m0, 1024
        """)
    srd(a, rG, sGW, 1280)
    GX, GW = 32, 44
    a(f"""
    s_lshl_b32 s{t0}, s{sRB}, 7
    s_lshl_b32 s{t1}, s{sCG}, 3
    s_add_u32 s{t0}, s{t0}, s{t1}
    s_lshl_b32 s{t1}, s{sLW}, 1
    s_add_u32 s63, s{t0}, s{t1}
    s_mul_i32 s{t0}, s63, 1280
    v_and_b32 v1, 31, v0
    v_lshrrev_b32 v2, 5, v0
    v_lshlrev_b32 v3, 4, v1
    v_lshlrev_b32 v4, 3, v1
    v_mul_u32_u24 v5, 1280, v2
    v_add_u32 v6, v5, v3
    v_add_u32 v7, v5, v4
    buffer_load_dwordx4 {vr(GX,4)}, v6, s[{rX}:{rX+3}], s{t0} offen
    buffer_load_dwordx4 {vr(GX+4,4)}, v6, s[{rX}:{rX+3}], s{t0} offen offset:512
    buffer_load_dwordx2 {vr(GX+8,2)}, v7, s[{rX}:{rX+3}], s{t0} offen offset:1024
    buffer_load_dwordx4 {vr(GW,4)}, v3, s[{rG}:{rG+3}], 0 offen
    buffer_load_dwordx4 {vr(GW+4,4)}, v3, s[{rG}:{rG+3}], 0 offen offset:512
    buffer_load_dwordx2 {vr(GW+8,2)}, v4, s[{rG}:{rG+3}], 0 offen offset:1024
    """)
    nE = 11
    a(f"s_waitcnt vmcnt({22+nE})\ns_barrier")
    a(f"s_waitcnt vmcnt({11+nE})\ns_barrier"); issue(0)
    a(f"s_waitcnt vmcnt({11+nE})\ns_barrier"); issue(1)
    for k in range(3, 8):
        a(f"s_waitcnt vmcnt(11)\ns_barrier"); issue((k+2) % 3)
    a.c("gate")
    a(f"v_mov_b32 v8, 0\nv_mov_b32 v9, 0")
    for i in range(10):
        a(f"v_dot2c_f32_bf16 v{8+(i&1)}, v{GX+i}, v{GW+i}")
    a(f"""
    s_nop 2
    v_add_f32 v8, v8, v9
    s_nop 1
    v_add_f32_dpp v8, v8, v8 row_shr:1 row_mask:0xf bank_mask:0xf
    s_nop 1
    v_add_f32_dpp v8, v8, v8 row_shr:2 row_mask:0xf bank_mask:0xf
    s_nop 1
    v_add_f32_dpp v8, v8, v8 row_shr:4 row_mask:0xf bank_mask:0xf
    s_nop 1
    v_add_f32_dpp v8, v8, v8 row_shr:8 row_mask:0xf bank_mask:0xf
    s_nop 1
    v_add_f32_dpp v8, v8, v8 row_bcast:15 row_mask:0xa bank_mask:0xf
    s_nop 0
    v_mul_f32 v8, 0xbfb8aa3b, v8
    v_exp_f32 v8, v8
    s_nop 0
    v_add_f32 v8, 1.0, v8
    v_rcp_f32 v8, v8
    v_lshlrev_b32 v9, 2, v2
    s_lshl_b32 s{t0}, s63, 2
    s_add_u32 s{t0}, s{t0}, {GB:#x}
    s_mov_b32 exec_lo, 0x80000000
    s_mov_b32 exec_hi, 0x80000000
    buffer_store_dword v8, v9, s[{rWS}:{rWS+3}], s{t0} offen
    s_mov_b64 exec, -1
    s_cmp_lt_u32 s{sU}, 544
    s_cselect_b32 s{sDst}, s{sDst}, 0x10000000
    """)
    a.c("pre-format: transpose-read and store fragments")
    a(f"""
    v_lshrrev_b32 v1, 5, v0
    v_bfe_u32 v2, v0, 2, 2
    v_lshl_add_u32 v1, v1, 2, v2
    v_mul_u32_u24 v1, 320, v1
    v_bfe_u32 v2, v0, 4, 1
    v_lshl_add_u32 v1, v2, 5, v1
    v_and_b32 v2, 3, v0
    v_lshl_add_u32 v1, v2, 3, v1
    s_mul_i32 s{t0}, s{sLW}, 5120
    s_add_u32 s{t0}, s{t0}, {PFL}
    v_add_u32 v1, s{t0}, v1
    v_lshlrev_b32 v2, 4, v0
    """)
    for cb in range(5):
        for j in range(2):
            a(f"ds_read_b64_tr_b16 {vr(64+4*cb+2*j,2)}, v1 offset:{cb*64+j*2560}")
    a("s_waitcnt lgkmcnt(0)")
    for cb in range(5):
        if cb == 4: a(f"s_add_u32 s{sDst}, s{sDst}, 4096")
        a(f"buffer_store_dwordx4 {vr(64+4*cb,4)}, v2, s[{rWS}:{rWS+3}], s{sDst} offen offset:{(cb%4)*1024}")
    a("s_waitcnt vmcnt(17)\ns_barrier\ns_waitcnt vmcnt(6)\ns_barrier\ns_barrier")
    a(f"{L('end')}:")
    a("s_endpgm")
    return khead(name) + a.text()
```

```python
from asm import *
K2_LDS = 163840

def gen_k2(name):
    a = Asm()
    L = lambda s: f"L_{name}_{s}"
    sWS, rWS = 4, 8
    sWv, sHD, sTT, sOff, sCnt = 12, 13, 14, 15, 16
    t0, t1, t2, t3 = 20, 21, 22, 23
    sVM = 24
    sLO = 26
    S = [16, 32]; O = 48; NM = 64; Q1 = 80; Q2 = 84; K1 = 88; K2 = 92; V = [96, 104]; IDX = 112
    vK, vV = 2, 3
    VD = 4
    a(f"""
    s_cmp_ge_u32 s2, 256
    s_cbranch_scc1 {L('end')}
    s_load_dwordx2 s[4:5], s[0:1], 72
    v_lshrrev_b32 v1, 6, v0
    v_and_b32 v0, 63, v0
    s_and_b32 s{t0}, s2, 7
    v_readfirstlane_b32 s{sWv}, v1
    s_lshr_b32 s{t1}, s2, 3
    s_lshl_b32 s{t0}, s{t0}, 2
    s_lshr_b32 s{t2}, s{t1}, 3
    s_add_u32 s{sHD}, s{t0}, s{t2}
    s_and_b32 s{t1}, s{t1}, 7
    s_lshl_b32 s{t1}, s{t1}, 3
    s_add_u32 s{sTT}, s{t1}, s{sWv}
    s_mul_i32 s{t0}, s{sHD}, 1280
    s_mul_i32 s{t1}, s{sHD}, 320
    s_add_u32 s{t0}, s{t0}, {KB:#x}
    s_add_u32 s{t1}, s{t1}, {VB:#x}
    """)
    a.c("DMA source offsets: chunk q = 64 i + lane of a tile pair")
    for i in range(5):
        a(f"""
        v_add_u32 v9, {64*i}, v0
        v_cmp_le_u32 vcc, 160, v9
        v_subrev_u32 v10, 160, v9
        v_mov_b32 v12, 0
        v_cndmask_b32 v9, v9, v10, vcc
        v_mov_b32 v13, {TTS}
        v_cndmask_b32 v12, v12, v13, vcc
        v_subrev_u32 v10, 80, v9
        v_mul_u32_u24 v11, 3277, v10
        v_lshrrev_b32 v11, 16, v11
        v_mul_u32_u24 v13, {10240-320}, v11
        v_lshl_add_u32 v13, v10, 4, v13
        v_add_u32 v13, s{t1}, v13
        v_cmp_gt_u32 vcc, 80, v9
        v_lshlrev_b32 v9, 4, v9
        v_add_u32 v9, s{t0}, v9
        v_cndmask_b32 v9, v13, v9, vcc
        v_add_u32 v{VD+i}, v9, v12
        """)
    a(f"""
    s_mul_i32 s{sOff}, s{sWv}, {2*TTS}
    s_mul_i32 s{t2}, s{sWv}, 5120
    s_waitcnt lgkmcnt(0)
    """)
    srd(a, rWS, sWS, WS_USED)
    a(f"""
    s_mul_i32 s{t0}, s{sTT}, {TTS}
    s_mul_i32 s{t1}, s{sHD}, 1280
    s_add_u32 s{t0}, s{t0}, s{t1}
    v_and_b32 v9, 31, v0
    v_lshrrev_b32 v10, 5, v0
    v_lshlrev_b32 v11, 3, v9
    v_lshl_add_u32 v12, v10, 8, v11
    """)
    def dma(stage):
        a(f"s_add_u32 m0, s{t2}, {stage*40960}")
        for i in range(5):
            if i: a("s_add_u32 m0, m0, 1024")
            a("s_nop 0")
            a(f"buffer_load_dwordx4 v{VD+i}, s[{rWS}:{rWS+3}], s{sOff} offen lds")
        a(f"s_add_u32 s{sOff}, s{sOff}, {16*TTS}")
    a(f"""
    buffer_load_dwordx2 {vr(Q1,2)}, v12, s[{rWS}:{rWS+3}], s{t0} offen
    buffer_load_dwordx2 {vr(Q1+2,2)}, v12, s[{rWS}:{rWS+3}], s{t0} offen offset:512
    buffer_load_dwordx2 {vr(Q2,2)}, v11, s[{rWS}:{rWS+3}], s{t0} offen offset:1024
    """)
    for st in range(4): dma(st)
    a.c("LDS read addresses")
    a(f"""
    v_and_b32 v12, 24, v9
    v_and_b32 v13, 3, v9
    v_lshl_add_u32 v12, v13, 1, v12
    v_bfe_u32 v13, v9, 2, 1
    v_add_u32 v12, v12, v13
    v_lshlrev_b32 v12, 3, v12
    v_lshl_add_u32 v{vK}, v10, 8, v12
    v_mul_u32_u24 v13, 320, v10
    v_lshl_add_u32 v13, v9, 4, v13
    v_add_u32 v{vV}, 1280, v13
    v_mov_b32 v{IDX}, 0xdddddddd
    s_mov_b32 s{sVM}, 0x000fffff
    s_mov_b32 s{sVM+1}, 0x000fffff
    s_mov_b32 s{sLO}, -1
    s_mov_b32 s{sLO+1}, 0
    """)
    for i in range(16):
        a(f"v_mov_b32 v{O+i}, 0")
        a(f"v_mov_b32 v{S[1]+i}, 0")
        a(f"v_mov_b32 v{V[0]+i}, 0x3f803f80")
    def rdK(t):
        return [f"ds_read2st64_b64 {vr(K1,4)}, v{vK} offset0:{5*t} offset1:{5*t+1}",
                f"ds_read_b64 {vr(K2,2)}, v{vK} offset:{2560*t+1024}"]
    def rdV(t, b):
        return [f"s_mov_b64 exec, s[{sVM}:{sVM+1}]",
                f"ds_read_b128 {vr(V[b],4)}, v{vV} offset:{2560*t}",
                f"ds_read_b128 {vr(V[b]+4,4)}, v{vV} offset:{2560*t+640}",
                "s_mov_b64 exec, -1"]
    M1 = lambda b, c: f"v_mfma_f32_32x32x16_bf16 {vr(S[b],16)}, {vr(K1,4)}, {vr(Q1,4)}, {c}"
    M2 = lambda b: f"v_mfma_f32_32x32x8_bf16 {vr(S[b],16)}, {vr(K2,2)}, {vr(Q2,2)}, {vr(S[b],16)}"
    P = lambda b, s: f"v_smfmac_f32_32x32x32_bf16 {vr(O,16)}, {vr(V[b]+4*s,4)}, {vr(S[b]+8*s,8)}, v{IDX}"
    a(f"""
    s_waitcnt vmcnt(15)
    s_mov_b64 exec, s[{sLO}:{sLO+1}]
    s_not_b64 exec, exec
    v_mov_b32 v{Q2}, 0
    v_mov_b32 v{Q2+1}, 0
    s_mov_b64 exec, -1
    s_barrier
    """)
    for x in rdK(0) + rdV(0, 0): a(x)
    a("s_waitcnt lgkmcnt(2)")
    a(M1(0, "0")); a(M2(0))
    a("s_nop 11")
    a(f"v_max3_f32 v9, v{S[0]}, v{S[0]+1}, v{S[0]+2}")
    a(f"v_max3_f32 v10, v{S[0]+3}, v{S[0]+4}, v{S[0]+5}")
    for i in range(6, 14, 4):
        a(f"v_max3_f32 v9, v9, v{S[0]+i}, v{S[0]+i+1}")
        a(f"v_max3_f32 v10, v10, v{S[0]+i+2}, v{S[0]+i+3}")
    a(f"""
    v_max3_f32 v9, v9, v{S[0]+14}, v{S[0]+15}
    v_max_f32 v9, v9, v10
    v_mov_b32 v10, v9
    s_nop 1
    v_permlane32_swap_b32 v9, v10
    s_nop 0
    v_max_f32 v9, v9, v10
    """)
    for i in range(16): a(f"v_sub_f32 v{NM+i}, 0, v9")
    a("s_nop 1")
    a(M1(0, vr(NM,16))); a(M2(0))
    for x in rdK(1): a(x)
    a(f"""
    s_mov_b32 s{sCnt}, 0
    s_nop 9
    """)
    a(f".p2align 3\n{L('loop')}:")
    for t in range(16):
        b = t & 1
        e = [f"v_exp_f32 v{S[b]+i}, v{S[b]+i}" for i in range(16)]
        seq = e[0:2] + [P(b ^ 1, 1)] + e[2:6] + ["s_waitcnt lgkmcnt(0)", M1(b ^ 1, vr(NM,16))] + e[6:10] + [M2(b ^ 1)]
        if t == 14:
            seq += [f"s_cmp_lg_u32 s{sCnt}, 0", f"s_cbranch_scc1 {L('nobar')}", "s_waitcnt vmcnt(0)", "s_barrier", f"{L('nobar')}:"]
        k = rdK(t + 2); v = rdV(t + 1, b ^ 1)
        seq += [k[0], e[10], k[1], e[11]] + v + e[12:14] + [P(b, 0)] + e[14:16]
        if t == 15:
            seq += [f"v_add_u32 v{vK}, 40960, v{vK}", f"v_add_u32 v{vV}, 40960, v{vV}",
                    f"s_add_u32 s{sCnt}, s{sCnt}, 1", f"s_cmp_lg_u32 s{sCnt}, 4", f"s_cbranch_scc1 {L('loop')}"]
        for x in seq: a(x)
    a("s_nop 1")
    a(P(1, 1))
    a(f"""
    v_and_b32 v9, 31, v0
    v_lshrrev_b32 v10, 1, v9
    v_and_b32 v11, 1, v9
    v_lshl_add_u32 v10, v11, 4, v10
    v_lshlrev_b32 v10, 4, v10
    v_lshrrev_b32 v11, 5, v0
    v_lshl_add_u32 v11, v11, 9, v10
    s_mul_i32 s{t0}, s{sTT}, {TTS}
    s_add_u32 s{t0}, s{t0}, {OB:#x}
    s_lshl_b32 s{t1}, s{sHD}, 10
    s_add_u32 s{t1}, s{t1}, s{t0}
    s_lshr_b32 s{t2}, s{sHD}, 1
    s_lshl_b32 s{t2}, s{t2}, 9
    s_add_u32 s{t0}, s{t0}, s{t2}
    s_and_b32 s{t2}, s{sHD}, 1
    s_lshl_b32 s{t2}, s{t2}, 3
    s_add_u32 s{t0}, s{t0}, s{t2}
    s_add_u32 s{t0}, s{t0}, 32768
    {L('fin')}:
    v_cndmask_b32 v12, v{O+8}, v{O+12}, s[{sLO}:{sLO+1}]
    v_cmp_nlt_f32 vcc, 0x5d800000, v12
    v_cmp_lt_f32 s[28:29], 0, v12
    v_rcp_f32 v13, v12
    s_and_b64 vcc, vcc, s[28:29]
    s_cmp_eq_u64 vcc, -1
    s_cbranch_scc0 {L('slow')}
    {L('store')}:
    """)
    for i in range(12): a(f"v_mul_f32 v{O+i}, v{O+i}, v13")
    for i in range(6): a(f"v_cvt_pk_bf16_f32 v{S[0]+i}, v{O+2*i}, v{O+2*i+1}")
    a(f"""
    buffer_store_dwordx4 {vr(S[0],4)}, v11, s[{rWS}:{rWS+3}], s{t1} offen
    s_mov_b64 exec, s[{sLO}:{sLO+1}]
    buffer_store_dwordx2 {vr(S[0]+4,2)}, v10, s[{rWS}:{rWS+3}], s{t0} offen
    {L('end')}:
    s_endpgm
    """)
    a(f"{L('slow')}:")
    sKo, sVo, sI = 30, 31, 32
    vM, vA, vKg, vVg = 14, 15, 4, 5
    a(f"""
    s_mul_i32 s{sKo}, s{sHD}, 1280
    s_add_u32 s{sKo}, s{sKo}, {KB:#x}
    s_mul_i32 s{sVo}, s{sHD}, 320
    s_add_u32 s{sVo}, s{sVo}, {VB:#x}
    v_subrev_u32 v{vKg}, {4*40960}, v{vK}
    v_lshrrev_b32 v6, 5, v0
    v_mul_u32_u24 v6, 10240, v6
    v_lshl_add_u32 v{vVg}, v9, 4, v6
    v_add_u32 v6, 20480, v{vVg}
    v_and_b32 v7, 0xff, v{vKg}
    v_mov_b32 v{vM}, 0xff800000
    s_mov_b32 s{sI}, 0
    s_waitcnt lgkmcnt(0)
    """)
    for i in range(16): a(f"v_mov_b32 v{O+i}, 0")
    a(f"""
    {L('sloop')}:
    buffer_load_dwordx2 {vr(K1,2)}, v{vKg}, s[{rWS}:{rWS+3}], s{sKo} offen
    buffer_load_dwordx2 {vr(K1+2,2)}, v{vKg}, s[{rWS}:{rWS+3}], s{sKo} offen offset:512
    buffer_load_dwordx2 {vr(K2,2)}, v7, s[{rWS}:{rWS+3}], s{sKo} offen offset:1024
    s_mov_b64 exec, s[{sVM}:{sVM+1}]
    buffer_load_dwordx4 {vr(V[0],4)}, v{vVg}, s[{rWS}:{rWS+3}], s{sVo} offen
    buffer_load_dwordx4 {vr(V[0]+4,4)}, v6, s[{rWS}:{rWS+3}], s{sVo} offen
    s_mov_b64 exec, -1
    s_add_u32 s{sKo}, s{sKo}, {TTS}
    s_add_u32 s{sVo}, s{sVo}, {TTS}
    s_waitcnt vmcnt(0)
    """)
    a(M1(0, "0")); a(M2(0))
    a("s_nop 11")
    a(f"v_max3_f32 v8, v{S[0]}, v{S[0]+1}, v{vM}")
    for i in range(2, 16, 2):
        a(f"v_max3_f32 v8, v8, v{S[0]+i}, v{S[0]+i+1}")
    a(f"""
    v_mov_b32 v12, v8
    s_nop 1
    v_permlane32_swap_b32 v8, v12
    s_nop 0
    v_max_f32 v8, v8, v12
    v_sub_f32 v{vA}, v{vM}, v8
    v_exp_f32 v{vA}, v{vA}
    v_mov_b32 v{vM}, v8
    """)
    for i in range(16):
        a(f"v_sub_f32 v{S[0]+i}, v{S[0]+i}, v8")
        a(f"v_mul_f32 v{O+i}, v{O+i}, v{vA}")
    for i in range(16): a(f"v_exp_f32 v{S[0]+i}, v{S[0]+i}")
    a("s_nop 1")
    a(P(0, 0)); a(P(0, 1))
    a(f"""
    s_add_u32 s{sI}, s{sI}, 1
    s_cmp_lg_u32 s{sI}, 64
    s_nop 11
    s_cbranch_scc1 {L('sloop')}
    v_cndmask_b32 v12, v{O+8}, v{O+12}, s[{sLO}:{sLO+1}]
    v_rcp_f32 v13, v12
    s_branch {L('store')}
    """)
    return khead(name) + a.text()
```

```python
from asm import *
PST = 1040
PKQ = 20 * PST
K3_LDS = 4 * PKQ

def gen_k3(name):
    a = Asm()
    L = lambda s: f"L_{name}_{s}"
    sWS, sOUT, rWS, rOUT = 4, 6, 8, 12
    sWv, sTT, sC, sKQ, sNH = 16, 17, 18, 19, 20
    t0, t1, t2, t3 = 22, 23, 24, 25
    sAo, sBo = 26, 27
    ACCA, ACCB, FR = 16, 64, 112
    NB = 8
    a(f"""
    s_cmp_ge_u32 s2, 256
    s_cbranch_scc1 {L('end')}
    s_load_dwordx2 s[4:5], s[0:1], 72
    s_load_dwordx2 s[6:7], s[0:1], 56
    v_lshrrev_b32 v1, 6, v0
    v_and_b32 v2, 63, v0
    s_and_b32 s{t0}, s2, 7
    v_readfirstlane_b32 s{sWv}, v1
    s_lshr_b32 s{t1}, s2, 3
    s_lshl_b32 s{t0}, s{t0}, 3
    s_lshr_b32 s{t2}, s{t1}, 2
    s_add_u32 s{sTT}, s{t0}, s{t2}
    s_and_b32 s{sC}, s{t1}, 3
    s_and_b32 s{sKQ}, s{sWv}, 3
    s_lshr_b32 s{sNH}, s{sWv}, 2
    v_lshlrev_b32 v3, 4, v2
    v_and_b32 v4, 31, v2
    v_lshlrev_b32 v4, 2, v4
    s_waitcnt lgkmcnt(0)
    """)
    srd(a, rWS, sWS, WS_USED)
    srd(a, rOUT, sOUT, 2048*1280)
    a(f"""
    s_lshl_b32 s{t0}, s{sTT}, 7
    s_add_u32 s{t0}, s{t0}, {GB:#x}
    buffer_load_dword v5, v4, s[{rWS}:{rWS+3}], s{t0} offen
    s_cmp_eq_u32 s{sNH}, 0
    s_cbranch_scc0 {L('n2')}
    """)
    for nb, lab in ((3, 'n3'), (2, 'n2')):
        a(f"{L(lab)}:")
        cb0 = 0 if nb == 3 else 3
        steps = [('o', i) for i in range(10)] + [('h', i) for i in range(24)]
        def setbase(kind):
            if kind == 'o':
                a(f"""
                s_mul_i32 s{sBo}, s{sTT}, {TTS}
                s_mul_i32 s{t0}, s{sKQ}, 10240
                s_add_u32 s{sBo}, s{sBo}, s{t0}
                s_add_u32 s{sBo}, s{sBo}, {OB:#x}
                s_mul_i32 s{sAo}, s{sC}, 40
                s_mul_i32 s{t0}, s{sKQ}, 10
                s_add_u32 s{sAo}, s{sAo}, s{t0}
                s_mul_i32 s{sAo}, s{sAo}, 5120
                s_add_u32 s{sAo}, s{sAo}, {WOF + cb0*1024:#x}
                """)
            else:
                a(f"""
                s_mul_i32 s{sBo}, s{sTT}, 98304
                s_mul_i32 s{t0}, s{sKQ}, 24576
                s_add_u32 s{sBo}, s{sBo}, s{t0}
                s_add_u32 s{sBo}, s{sBo}, {HB:#x}
                s_mul_i32 s{sAo}, s{sC}, 96
                s_mul_i32 s{t0}, s{sKQ}, 24
                s_add_u32 s{sAo}, s{sAo}, s{t0}
                s_mul_i32 s{sAo}, s{sAo}, 5120
                s_add_u32 s{sAo}, s{sAo}, {W2F + cb0*1024:#x}
                """)
        def load(n):
            kind, i = steps[n]
            if i == 0: setbase(kind)
            f = FR + 16*(n % NB)
            a(f"buffer_load_dwordx4 {vr(f,4)}, v3, s[{rWS}:{rWS+3}], s{sBo} offen")
            for c in range(nb):
                a(f"buffer_load_dwordx4 {vr(f+4+4*c,4)}, v3, s[{rWS}:{rWS+3}], s{sAo} offen offset:{c*1024}")
            a(f"s_add_u32 s{sBo}, s{sBo}, 1024")
            a(f"s_add_u32 s{sAo}, s{sAo}, 5120")
        for n in range(NB): load(n)
        per = nb + 1
        for n in range(len(steps)):
            kind, i = steps[n]
            left = min(NB - 1, len(steps) - 1 - n)
            a(f"s_waitcnt vmcnt({left*per})")
            f = FR + 16*(n % NB)
            acc = ACCA if kind == 'o' else ACCB
            for c in range(nb):
                d = vr(acc + 16*c, 16)
                a(f"v_mfma_f32_32x32x16_bf16 {d}, {vr(f+4+4*c,4)}, {vr(f,4)}, {d if i else 0}")
            if n + NB < len(steps): load(n + NB)
        a.c("r = g*a + (1-g)*b, partial over this k quarter -> LDS")
        a(f"""
        v_sub_f32 v6, 1.0, v5
        s_mul_i32 s{t0}, s{sKQ}, {PKQ}
        s_add_u32 s{t0}, s{t0}, {cb0*4*PST}
        v_add_u32 v7, s{t0}, v3
        """)
        for r in range(16*nb): a(f"v_mul_f32 v{ACCA+r}, v{ACCA+r}, v5")
        a("s_nop 7")
        for q in range(4*nb):
            for r in range(4): a(f"v_fmac_f32 v{ACCA+4*q+r}, v{ACCB+4*q+r}, v6")
            a(f"ds_write_b128 v7, {vr(ACCA+4*q,4)} offset:{q*PST}")
        if nb == 3: a(f"s_branch {L('red')}")
    a(f"{L('red')}:")
    a.c("item = (token, piece): 640 items; thread handles tid and, for tid < 128, 512 + tid")
    def item(first):
        R = 16 if first else 64
        a(f"""
        v_mul_u32_u24 v8, 3277, v0
        v_lshrrev_b32 v8, 16, v8
        v_mul_u32_u24 v9, 20, v8
        v_sub_u32 v9, v0, v9
        v_mul_u32_u24 v10, {PST}, v9
        v_lshl_add_u32 v10, v8, 4, v10
        v_mul_u32_u24 v11, 1280, v8
        v_lshl_add_u32 v11, v9, 4, v11
        """)
        if first:
            a(f"""
            s_mul_i32 s{t0}, s{sTT}, {32*1280}
            s_mul_i32 s{t1}, s{sC}, 320
            s_add_u32 s{t0}, s{t0}, s{t1}
            s_waitcnt lgkmcnt(0)
            s_barrier
            """)
        for kq in range(4):
            for hf in range(2):
                a(f"ds_read_b128 {vr(R+8*kq+4*hf,4)}, v10 offset:{kq*PKQ+hf*512}")
        a("s_waitcnt lgkmcnt(4)")
        for r in range(8): a(f"v_add_f32 v{R+r}, v{R+r}, v{R+8+r}")
        a("s_waitcnt lgkmcnt(0)")
        for r in range(8): a(f"v_add_f32 v{R+16+r}, v{R+16+r}, v{R+24+r}")
        for r in range(8): a(f"v_add_f32 v{R+r}, v{R+r}, v{R+16+r}")
        for r in range(4): a(f"v_cvt_pk_bf16_f32 v{R+r}, v{R+2*r}, v{R+2*r+1}")
        a(f"buffer_store_dwordx4 {vr(R,4)}, v11, s[{rOUT}:{rOUT+3}], s{t0} offen")
    item(True)
    a(f"""
    s_cmp_lt_u32 s{sWv}, 2
    s_cbranch_scc0 {L('end')}
    v_add_u32 v0, 512, v0
    """)
    item(False)
    a(f"{L('end')}:\ns_endpgm")
    return khead(name) + a.text()
```

```python
import sys, os
sys.path.insert(0, os.path.dirname(os.path.abspath(__file__)))
from asm import *
import k1, k2, k3
NAME = "gated_mix__mha_block__dense_activation_relu__prompt"
def build(extra_empty=0):
    ks = [("gm_k1_kernel", k1.gen_k1, k1.K1_LDS), ("gm_k2_kernel", k2.gen_k2, k2.K2_LDS), ("gm_k3_kernel", k3.gen_k3, k3.K3_LDS)]
    hdr = "; generated by gen/build.py (hand-written generator): GEMM1 -> attention -> output GEMM\n"
    for n, g, lds in ks:
        hdr += f"; @launch kernel={n} grid=(256,1,1) block=(512,1,1) lds={lds}\n"
    for i in range(extra_empty):
        hdr += f"; @launch kernel=gm_e_kernel grid=(256,1,1) block=(512,1,1) lds=0\n"
    s = hdr + '.amdgcn_target "amdgcn-amd-amdhsa--gfx950"\n'
    for n, g, lds in ks: s += g(n)
    if extra_empty: s += khead("gm_e_kernel") + "  s_endpgm\n"
    for n, g, lds in ks: s += kdesc(n)
    if extra_empty: s += kdesc("gm_e_kernel")
    return s
if __name__ == "__main__":
    out = sys.argv[1] if len(sys.argv) > 1 else f"cdna_kernels/{NAME}.s"
    extra = int(sys.argv[2]) if len(sys.argv) > 2 else 0
    open(out, "w").write(build(extra))
```

```python
class Asm:
    def __init__(self):
        self.lines = []
    def __call__(self, s=""):
        for l in s.split("\n"):
            l = l.strip()
            if l == "": continue
            if l.endswith(":") or l.startswith("."):
                self.lines.append(l)
            else:
                self.lines.append("  " + l)
    def c(self, s):
        self.lines.append("  ; " + s)
    def text(self):
        return "\n".join(self.lines) + "\n"

def vr(a, n=1):
    return f"v{a}" if n == 1 else f"v[{a}:{a+n-1}]"
def sr(a, n=1):
    return f"s{a}" if n == 1 else f"s[{a}:{a+n-1}]"

def interleave(main, fill, every=1, start=0):
    out = []; fi = 0
    for i, m in enumerate(main):
        out.append(m)
        if i >= start and (i - start) % every == 0 and fi < len(fill):
            out.append(fill[fi]); fi += 1
    out += fill[fi:]
    return out

TTS = 40960
QB = 0x0000000
KB = 0x0280000
VB = 0x0500000
HB = 0x0780000
OB = 0x0D80000
GB = 0x1000000
W2F = 0x1010000
WOF = 0x11F0000
WS_USED = 0x1400000
QSCALE = 1.4426950408889634 / (20 ** 0.5)

import struct
def f2u(x):
    return struct.unpack("<I", struct.pack("<f", x))[0]

def srd(a, base, ptr, nbytes):
    a(f"s_mov_b32 s{base}, s{ptr}")
    a(f"s_mov_b32 s{base+1}, s{ptr+1}")
    a(f"s_mov_b32 s{base+2}, {nbytes:#x}")
    a(f"s_mov_b32 s{base+3}, 0x20000")

def kdesc(name, vgpr=256, sgpr=96):
    return f""".section .rodata,"a"
.p2align 6
.amdhsa_kernel {name}
  .amdhsa_next_free_vgpr {vgpr}
  .amdhsa_next_free_sgpr {sgpr}
  .amdhsa_accum_offset {min(256,(vgpr+3)//4*4)}
  .amdhsa_group_segment_fixed_size 0
  .amdhsa_kernarg_size 80
  .amdhsa_user_sgpr_count 2
  .amdhsa_user_sgpr_kernarg_segment_ptr 1
  .amdhsa_system_sgpr_workgroup_id_x 1
.end_amdhsa_kernel
"""
def khead(name):
    return f""".text
.globl {name}
.p2align 8
.type {name},@function
{name}:
"""

import os
STAMP = os.environ.get("STAMP", "0") == "1"
STB = 0x1300000
class Stamps:
    def __init__(self, a, kidx, base=64):
        self.a = a; self.k = kidx; self.base = base; self.n = 0
    def mark(self, idx=None):
        if not STAMP: return
        i = self.n if idx is None else idx
        self.n = max(self.n, i + 1)
        assert i < 16
        self.a(f"s_memtime s[{self.base+2*i}:{self.base+2*i+1}]")
    def real(self, idx):
        if not STAMP: return
        self.a(f"s_memrealtime s[{self.base+2*idx}:{self.base+2*idx+1}]")
    def flush(self, rWS, sWv, tmp=96):
        if not STAMP: return
        a = self.a
        a("s_mov_b64 exec, -1")
        a(f"s_memrealtime s[{self.base+30}:{self.base+31}]") if False else None
        a("s_waitcnt lgkmcnt(0)")
        a(f"s_lshl_b32 s{tmp}, s2, 3\ns_add_u32 s{tmp}, s{tmp}, s{sWv}\ns_lshl_b32 s{tmp}, s{tmp}, 6\ns_add_u32 s{tmp}, s{tmp}, {STB + self.k*0x40000:#x}")
        a("v_mov_b32 v1, 0")
        for i in range(16):
            a(f"v_mov_b32 v2, s{self.base+2*i}")
            a(f"buffer_store_dword v2, v1, s[{rWS}:{rWS+3}], s{tmp} offen offset:{4*i}")
```

```python
from asm import *
import os
WF = 0x1010000
WFB = 136 * 1024
CNT = 0x12C0000
CNT_H = CNT + 128 * 256
CNT_O = CNT + 144 * 256
SLOT = 32768
PFL = 4 * SLOT
LWORD = 152576
QL = 153600
PARTL = 98304
OL = 122880
F_LDS = 163840
SPIN = 30000
OPT = os.environ.get("FKOPT", "").split(",")

class VQ:
    def __init__(self): self.q = []
    def add(self, tag): self.q.append(tag)
    def after(self, tag):
        i = max(k for k, t in enumerate(self.q) if t == tag)
        n = len(self.q) - 1 - i
        assert n <= 63, (tag, n)
        return n

def gen(name):
    a = Asm()
    L = lambda s: f"L_{s}"
    st = Stamps(a, 0)
    sX, sWQ, sWO, sW1, sW2, sGW, sOUT, sDBG, sWS = 4, 6, 8, 12, 14, 16, 18, 20, 22
    rWS, rX, rW, rPF, rG = 24, 28, 32, 36, 40
    sWv, sRB, sCG, sT, sHD, sQB, sTD, sC = 44, 45, 46, 47, 48, 49, 50, 51
    t0, t1, t2, t3 = 52, 53, 54, 55
    WSR = f"s[{rWS}:{rWS+3}]"
    vL16, vK, vV, IDX, vGQ, vGD, vT = 1, 2, 3, 4, 5, 6, 7
    S = [8, 24]; O = 40; V = [56, 64]; Q1 = 72; K1 = 76; Q2 = 80; K2 = 82; FR = 84; NFR = 43
    VD = 250
    sVM, sLO = 60, 62

    st.mark(0); st.real(14)
    a(f"""
    s_cmp_ge_u32 s2, 256
    s_cbranch_scc1 {L('end')}
    s_load_dwordx4 s[4:7], s[0:1], 0
    s_load_dwordx4 s[12:15], s[0:1], 32
    s_load_dwordx8 s[16:23], s[0:1], 48
    s_load_dwordx2 s[8:9], s[0:1], 16
    v_lshrrev_b32 v1, 6, v0
    v_and_b32 v0, 63, v0
    s_and_b32 s{t0}, s2, 7
    v_readfirstlane_b32 s{sWv}, v1
    s_lshr_b32 s{t1}, s2, 3
    s_and_b32 s{sQB}, s{t1}, 7
    s_lshr_b32 s{t3}, s{t1}, 3
    s_and_b32 s{t2}, s{t0}, 1
    s_lshl_b32 s{t2}, s{t2}, 3
    s_add_u32 s{sRB}, s{t2}, s{sQB}
    s_lshr_b32 s{t2}, s{t0}, 1
    s_lshl_b32 s{t2}, s{t2}, 2
    s_add_u32 s{sCG}, s{t2}, s{t3}
    s_lshl_b32 s{t2}, s{t0}, 2
    s_add_u32 s{sHD}, s{t2}, s{t3}
    s_lshl_b32 s{t2}, s{t0}, 3
    s_lshr_b32 s{t3}, s{t1}, 2
    s_add_u32 s{sTD}, s{t2}, s{t3}
    s_and_b32 s{sC}, s{t1}, 3
    s_cmp_ge_u32 s{sWv}, 4
    s_cbranch_scc1 {L('loader')}
    """)

    def att_setup(T):
        a(f"""
        s_mul_i32 s{t0}, s{sHD}, 1280
        s_mul_i32 s{t1}, s{sHD}, 320
        s_add_u32 s{t0}, s{t0}, {KB:#x}
        s_add_u32 s{t1}, s{t1}, {VB:#x}
        """)
        for i in range(5):
            a(f"""
            v_add_u32 v{T}, {64*i}, v0
            v_cmp_le_u32 vcc, 160, v{T}
            v_subrev_u32 v{T+1}, 160, v{T}
            v_mov_b32 v{T+3}, 0
            v_cndmask_b32 v{T}, v{T}, v{T+1}, vcc
            v_mov_b32 v{T+4}, {TTS}
            v_cndmask_b32 v{T+3}, v{T+3}, v{T+4}, vcc
            v_subrev_u32 v{T+1}, 80, v{T}
            v_mul_u32_u24 v{T+2}, 3277, v{T+1}
            v_lshrrev_b32 v{T+2}, 16, v{T+2}
            v_mul_u32_u24 v{T+4}, {10240-320}, v{T+2}
            v_lshl_add_u32 v{T+4}, v{T+1}, 4, v{T+4}
            v_add_u32 v{T+4}, s{t1}, v{T+4}
            v_cmp_gt_u32 vcc, 80, v{T}
            v_lshlrev_b32 v{T}, 4, v{T}
            v_add_u32 v{T}, s{t0}, v{T}
            v_cndmask_b32 v{T}, v{T+4}, v{T}, vcc
            v_add_u32 v{VD+i}, v{T}, v{T+3}
            """)
        a(f"""
        v_lshlrev_b32 v{vL16}, 4, v0
        v_and_b32 v{T}, 31, v0
        v_lshrrev_b32 v{T+1}, 5, v0
        v_and_b32 v{T+2}, 24, v{T}
        v_and_b32 v{T+3}, 3, v{T}
        v_lshl_add_u32 v{T+2}, v{T+3}, 1, v{T+2}
        v_bfe_u32 v{T+3}, v{T}, 2, 1
        v_add_u32 v{T+2}, v{T+2}, v{T+3}
        v_lshlrev_b32 v{T+2}, 3, v{T+2}
        v_lshl_add_u32 v{vK}, v{T+1}, 8, v{T+2}
        v_mul_u32_u24 v{T+3}, 320, v{T+1}
        v_lshl_add_u32 v{T+3}, v{T}, 4, v{T+3}
        v_add_u32 v{vV}, 1280, v{T+3}
        v_mov_b32 v{IDX}, 0xdddddddd
        s_mul_i32 s{t0}, s{sWv}, 1280
        s_add_u32 s{t0}, s{t0}, {QL}
        v_lshlrev_b32 v{T+2}, 3, v{T}
        v_lshl_add_u32 v{T+2}, v{T+1}, 8, v{T+2}
        v_add_u32 v{vT}, s{t0}, v{T+2}
        v_lshrrev_b32 v{T+2}, 1, v{T}
        v_and_b32 v{T+3}, 1, v{T}
        v_lshl_add_u32 v{T+2}, v{T+3}, 4, v{T+2}
        v_lshlrev_b32 v{vGQ}, 2, v{T+2}
        v_lshlrev_b32 v{vGD}, 2, v{T}
        s_mov_b32 s{sVM}, 0x000fffff
        s_mov_b32 s{sVM+1}, 0x000fffff
        s_mov_b32 s{sLO}, -1
        s_mov_b32 s{sLO+1}, 0
        """)
        for i in range(16):
            a(f"v_mov_b32 v{O+i}, 0")
            a(f"v_mov_b32 v{S[1]+i}, 0")
            a(f"v_mov_b32 v{V[0]+i}, 0")
        a(f"""
        v_mov_b32 v{Q2}, 0
        v_mov_b32 v{Q2+1}, 0
        v_mov_b32 v{K2}, 0x3f80
        v_mov_b32 v{K2+1}, 0
        s_mov_b32 exec_lo, 0x01100000
        s_mov_b32 exec_hi, 0x01100000
        """)
        for i in range(16): a(f"v_mov_b32 v{V[0]+i}, 0x3f803f80")
        a("s_mov_b64 exec, -1")

    XF, WFR, ACC, TMP = 84, 116, 164, 228
    vXA0, vXA1, vW = 244, 245, 246
    sTR, sFC, sDelta, sCnt, sSlot = 56, 57, 58, 59, 3
    R16, G4 = 232, 233
    att_setup(228)
    a(f"""
    s_lshr_b32 s{sTR}, s{sWv}, 1
    s_and_b32 s{sFC}, s{sWv}, 1
    s_mul_i32 s{sT}, s{sCG}, 52
    s_lshr_b32 s{sT}, s{sT}, 8
    v_and_b32 v{R16}, 15, v0
    v_lshrrev_b32 v{G4}, 4, v0
    v_lshrrev_b32 v228, 1, v{R16}
    v_xor_b32 v228, v228, v{G4}
    v_lshlrev_b32 v228, 4, v228
    v_lshl_add_u32 v234, v{R16}, 7, v228
    v_bfe_u32 v228, v0, 2, 2
    v_lshl_add_u32 v235, v{G4}, 3, v228
    s_waitcnt lgkmcnt(0)
    """)
    srd(a, rWS, sWS, WS_USED)
    a(f"""
    s_cmp_eq_u32 s{sCG}, 15
    s_cbranch_scc1 {L('spare_c')}
    s_lshl_b32 s{t0}, s{sTR}, 13
    v_add_u32 v{vXA0}, s{t0}, v234
    v_xor_b32 v{vXA1}, 64, v{vXA0}
    v_and_b32 v229, 1, v{G4}
    v_lshl_add_u32 v228, v229, 2, v228
    s_lshl_b32 s{t0}, s{sFC}, 2
    v_xor_b32 v228, s{t0}, v228
    v_and_b32 v229, 3, v0
    v_lshlrev_b32 v229, 3, v229
    v_lshl_add_u32 v229, v235, 8, v229
    v_add_u32 v229, 16384, v229
    """)
    for aa in range(4):
        a(f"v_xor_b32 v230, {aa}, v228\nv_lshl_add_u32 v{vW+aa}, v230, 5, v229")
    for i in range(64): a(f"v_mov_b32 v{ACC+i}, 0")

    def reads(ph, buf, kk):
        r = []
        if ph == 1:
            for tb in range(4):
                r.append(f"ds_read_b128 {vr(XF+16*buf+4*tb,4)}, v{vXA1 if kk else vXA0} offset:{tb*2048}")
            for aa in range(4):
                for j in range(2):
                    r.append(f"ds_read_b64_tr_b16 {vr(WFR+16*buf+4*aa+2*j,2)}, v{vW+aa} offset:{kk*8192+j*1024}")
            return [r[0], r[4], r[5], r[1], r[2], r[3]] + r[6:]
        for tb in range(2):
            r.append(f"ds_read_b128 {vr(XF+8*buf+4*tb,4)}, v{vXA1 if kk else vXA0} offset:{tb*2048}")
        for aa in range(6):
            for j in range(2):
                r.append(f"ds_read_b64_tr_b16 {vr(WFR+24*buf+4*aa+2*j,2)}, v{vW+(aa&1)} offset:{kk*6144+j*768+aa*32}")
        return [r[0], r[2], r[3], r[1]] + r[4:]
    def mfmas(ph, buf, vtype):
        m = []
        na, nt = (4, 4) if ph == 1 else (6, 2)
        for aa in range(na):
            for tb in range(nt):
                w = vr(WFR+4*na*buf+4*aa, 4); x = vr(XF+4*nt*buf+4*tb, 4); d = vr(ACC+4*nt*aa+4*tb, 4)
                A, B = (x, w) if vtype else (w, x)
                m.append(f"v_mfma_f32_16x16x32_bf16 {d}, {A}, {B}, {d}")
        return m
    def mix(m, r):
        out = []; k = 0
        for i, x in enumerate(m):
            out.append(x)
            while k < len(r) and k * len(m) < (i + 1) * len(r) * (1.0 if len(r) > len(m) else 1.34):
                out.append(r[k]); k += 1
        return out + r[k:]
    def kloop(lab, ph, vtype):
        a(f".p2align 3\n{lab}:")
        a("s_waitcnt lgkmcnt(0)")
        for x in mix(mfmas(ph, 0, vtype), reads(ph, 1, 1)): a(x)
        a(f"""
        s_add_u32 s{sSlot}, s{sSlot}, 1
        s_cmp_eq_u32 s{sSlot}, 4
        s_mov_b32 s{sDelta}, {SLOT}
        s_cmov_b32 s{sDelta}, {-3*SLOT}
        s_cselect_b32 s{sSlot}, 0, s{sSlot}
        s_sub_u32 s{sCnt}, s{sCnt}, 1
        """)
        if ph == 2:
            a(f"""
            s_cmp_lg_u32 s{sCnt}, 5
            s_cbranch_scc1 {lab}_nw
            s_waitcnt vmcnt(0)
            {lab}_nw:
            """)
        a("s_waitcnt lgkmcnt(0)\ns_barrier")
        regs = [vXA0, vW, vW+1] + ([vW+2, vW+3] if ph == 1 else []) + [vXA1]
        m = mfmas(ph, 1, vtype)
        a(m[0])
        for r in regs: a(f"v_add_u32 v{r}, s{sDelta}, v{r}")
        for x in mix(m[1:], reads(ph, 0, 0)): a(x)
        a(f"s_cmp_lg_u32 s{sCnt}, 0\ns_cbranch_scc1 {lab}")
    a(f"s_mov_b32 s{sCnt}, 10\ns_mov_b32 s{sSlot}, 0")
    st.mark(1)
    a("s_barrier")
    st.mark(2)
    for x in reads(1, 0, 0): a(x)
    a(f"s_cmp_eq_u32 s{sT}, 2\ns_cbranch_scc1 {L('loopv')}")
    kloop(L('loopn'), 1, 0)
    a(f"s_branch {L('epi1')}")
    kloop(L('loopv'), 1, 1)
    a(f"{L('epi1')}:")
    st.mark(3)
    sBase, sUnit, sScale = 3, 58, 56
    a.c("Q/K/V store: base = T*region + TT*40960 + block*unit")
    a(f"""
    s_mul_i32 s{sBase}, s{sT}, {KB:#x}
    s_lshl_b32 s{t0}, s{sRB}, 2
    s_lshl_b32 s{t1}, s{sTR}, 1
    s_add_u32 s{t0}, s{t0}, s{t1}
    s_mul_i32 s{t0}, s{t0}, {TTS}
    s_add_u32 s{sBase}, s{sBase}, s{t0}
    s_mul_i32 s{t0}, s{sT}, 5
    s_sub_u32 s{t0}, s{sCG}, s{t0}
    s_lshl_b32 s{t0}, s{t0}, 3
    s_lshl_b32 s{t1}, s{sFC}, 2
    s_add_u32 s{t0}, s{t0}, s{t1}
    s_cmp_eq_u32 s{sT}, 2
    s_mov_b32 s{sUnit}, 1024
    s_cmov_b32 s{sUnit}, 256
    s_mov_b32 s{t1}, 256
    s_cmov_b32 s{t1}, 10240
    s_mul_i32 s{t0}, s{t0}, s{sUnit}
    s_add_u32 s{t0}, s{t0}, s{sBase}
    v_mul_u32_u24 v228, s{t1}, v{G4}
    v_lshl_add_u32 v228, v{R16}, 4, v228
    v_add_u32 v229, {TTS}, v228
    s_cmp_eq_u32 s{sT}, 0
    s_cselect_b32 s{sScale}, {f2u(QSCALE):#x}, 1.0
    s_mov_b32 s{sScale+1}, s{sScale}
    """)
    n = 0
    for aa in range(4):
        for tl in range(2):
            src = ACC + 16*aa + 8*tl
            T = 236 + 4*(n % 2); n += 1
            for q in range(4):
                a(f"v_pk_mul_f32 {vr(src+2*q,2)}, {vr(src+2*q,2)}, s[{sScale}:{sScale+1}]")
            for q in range(4):
                a(f"v_cvt_pk_bf16_f32 v{T+q}, v{src+2*q}, v{src+2*q+1}")
            a(f"buffer_store_dwordx4 {vr(T,4)}, v{229 if tl else 228}, {WSR}, s{t0} offen sc1")
        if aa < 3: a(f"s_add_u32 s{t0}, s{t0}, s{sUnit}")
    st.mark(4)
    a(f"s_branch {L('a2')}")
    a(f"""
    {L('spare_c')}:
    s_add_u32 s{t0}, s{sRB}, s{sWv}
    s_cmp_lg_u32 s{t0}, 0
    s_cbranch_scc1 {L('spare_b')}
    v_lshlrev_b32 v228, 8, v0
    v_mov_b32 v229, 0
    s_mov_b32 s{t0}, {CNT:#x}
    """)
    for i in range(4):
        a(f"buffer_store_dword v229, v228, {WSR}, s{t0} offen sc1")
        if i < 3: a(f"s_add_u32 s{t0}, s{t0}, 16384")
    srd(a, rG, sDBG, 256)
    a(f"""
    v_mov_b32 v228, 1
    s_waitcnt vmcnt(0)
    s_mov_b64 exec, 1
    buffer_store_dword v228, v229, s[{rG}:{rG+3}], 0 offen sc1
    s_mov_b64 exec, -1
    {L('spare_b')}:
    s_barrier
    {L('a2')}:
    s_lshl_b32 s{t0}, s{sWv}, 12
    s_add_u32 s{t0}, s{t0}, {2*SLOT}
    v_add_u32 v{vXA0}, s{t0}, v234
    v_xor_b32 v{vXA1}, 64, v{vXA0}
    v_mul_u32_u24 v228, 192, v235
    v_and_b32 v229, 3, v0
    v_lshl_add_u32 v228, v229, 3, v228
    v_add_u32 v228, {2*SLOT+16384}, v228
    v_and_b32 v229, 1, v{G4}
    v_lshlrev_b32 v229, 5, v229
    v_add_u32 v{vW}, v228, v229
    v_sub_u32 v{vW+1}, v228, v229
    s_waitcnt lgkmcnt(0)
    """)
    for x in reads(2, 0, 0): a(x)
    for i in range(48): a(f"v_mov_b32 v{ACC+i}, 0")
    a(f"s_mov_b32 s{sCnt}, 10\ns_mov_b32 s{sSlot}, 2")
    kloop(L('looph'), 2, 0)
    st.mark(5)
    a.c("H store: HB + TT*98304 + p*2048 + g*512 + token*16")
    a(f"""
    v_lshlrev_b32 v228, 9, v{G4}
    v_lshl_add_u32 v228, v{R16}, 4, v228
    s_lshl_b32 s{t0}, s{sRB}, 2
    s_add_u32 s{t0}, s{t0}, s{sWv}
    s_mul_i32 s{t0}, s{t0}, 98304
    s_mul_i32 s{t1}, s{sCG}, 6144
    s_add_u32 s{t0}, s{t0}, s{t1}
    s_add_u32 s{t0}, s{t0}, {HB:#x}
    """)
    n = 0
    for pa in range(3):
        for tb in range(2):
            T = 236 + 4*(n % 2); n += 1
            s0 = ACC + 16*pa + 4*tb
            for q, s in enumerate([s0, s0+2, s0+8, s0+10]):
                a(f"v_cvt_pk_bf16_f32 v{T+q}, v{s}, v{s+1}")
            for q in range(4): a(f"v_pk_max_i16 v{T+q}, v{T+q}, 0")
            a(f"buffer_store_dwordx4 {vr(T,4)}, v228, {WSR}, s{t0} offen offset:{(pa&1)*2048+tb*256} sc1")
        if pa == 1: a(f"s_add_u32 s{t0}, s{t0}, 4096")
    st.mark(6)
    a(f"s_branch {L('att')}")

    a(f"{L('loader')}:")
    sLW, sOX, sOW, sMX, sMW = 56, 57, 58, 59, 3
    sU, sR0, sRJ, sRH, sDst, sRow = 96, 97, 98, 99, 100, 101
    VX, VW1, VW2 = 84, 88, 92
    T = 100
    a(f"""
    s_sub_u32 s{sLW}, s{sWv}, 4
    v_lshrrev_b32 v{T}, 3, v0
    v_mul_u32_u24 v{T}, 1280, v{T}
    v_and_b32 v{T+1}, 7, v0
    v_lshrrev_b32 v{T+2}, 4, v0
    v_xor_b32 v{T+1}, v{T+1}, v{T+2}
    v_lshl_add_u32 v{VX}, v{T+1}, 4, v{T}
    v_xor_b32 v{T+1}, 4, v{T+1}
    v_lshl_add_u32 v{VX+1}, v{T+1}, 4, v{T}
    v_add_u32 v{VX+1}, {8*1280}, v{VX+1}
    v_add_u32 v{VX+2}, {16*1280}, v{VX}
    v_add_u32 v{VX+3}, {16*1280}, v{VX+1}
    v_and_b32 v{T}, 15, v0
    v_lshlrev_b32 v{T+1}, 1, v{T+2}
    v_xor_b32 v{T}, v{T}, v{T+1}
    v_mul_u32_u24 v{T+1}, 3840, v{T+2}
    v_lshl_add_u32 v{VW1}, v{T}, 4, v{T+1}
    v_add_u32 v{VW1+1}, {4*3840}, v{VW1}
    v_xor_b32 v{T}, 8, v{T}
    v_lshl_add_u32 v{VW1+2}, v{T}, 4, v{T+1}
    v_add_u32 v{VW1+2}, {8*3840}, v{VW1+2}
    v_add_u32 v{VW1+3}, {4*3840}, v{VW1+2}
    s_lshl_b32 s{t0}, s{sRB}, 7
    s_lshl_b32 s{t1}, s{sLW}, 5
    s_add_u32 s{t0}, s{t0}, s{t1}
    s_mul_i32 s{sOX}, s{t0}, 1280
    s_mul_i32 s{t0}, s{sLW}, {16*3840}
    s_lshl_b32 s{t1}, s{sCG}, 8
    s_add_u32 s{sOW}, s{t0}, s{t1}
    s_lshl_b32 s{sMX}, s{sLW}, 12
    s_add_u32 s{sMW}, s{sMX}, 16384
    s_waitcnt lgkmcnt(0)
    """)
    srd(a, rX, sX, 2048*1280)
    srd(a, rW, sWQ, 640*3840)
    vq = VQ()
    def issue(s):
        slot = s % 4
        a(f"s_add_u32 m0, s{sMX}, {slot*SLOT}")
        for i in range(4):
            if i: a("s_add_u32 m0, m0, 1024")
            a("s_nop 0")
            a(f"buffer_load_dwordx4 v{VX+i}, s[{rX}:{rX+3}], s{sOX} offen lds"); vq.add(f"S{s}")
        a(f"s_add_u32 m0, s{sMW}, {slot*SLOT}")
        nw, vw = (4, VW1) if s < 10 else (3, VW2)
        for i in range(nw):
            if i: a("s_add_u32 m0, m0, 1024")
            a("s_nop 0")
            a(f"buffer_load_dwordx4 v{vw+i}, s[{rW}:{rW+3}], s{sOW} offen lds"); vq.add(f"S{s}")
        a(f"s_add_u32 s{sOX}, s{sOX}, 128")
        a(f"s_add_u32 s{sOW}, s{sOW}, {64*3840 if s < 10 else 64*3072}")
    def to_w1():
        srd(a, rW, sW1, 640*3072)
        a(f"""
        s_mul_i32 s{t0}, s{sLW}, {16*3072}
        s_mul_i32 s{t1}, s{sCG}, 192
        s_add_u32 s{sOW}, s{t0}, s{t1}
        s_mul_i32 s{sMW}, s{sLW}, 3072
        s_add_u32 s{sMW}, s{sMW}, 16384
        """)
    def late_setup():
        srd(a, rWS, sWS, WS_USED)
        for i in range(3):
            a(f"""
            v_add_u32 v{T}, {64*i}, v0
            v_mul_u32_u24 v{T+1}, 5462, v{T}
            v_lshrrev_b32 v{T+1}, 16, v{T+1}
            v_mul_u32_u24 v{T+2}, 12, v{T+1}
            v_sub_u32 v{T+2}, v{T}, v{T+2}
            v_bfe_u32 v{T+3}, v{T+1}, 3, 1
            v_lshlrev_b32 v{T+3}, 1, v{T+3}
            v_xor_b32 v{T+2}, v{T+2}, v{T+3}
            v_mul_u32_u24 v{T+1}, 3072, v{T+1}
            v_lshl_add_u32 v{VW2+i}, v{T+2}, 4, v{T+1}
            """)
        a(f"v_mov_b32 v{T}, {LWORD}\nv_mov_b32 v{T+1}, 0\nds_write_b32 v{T}, v{T+1}")
    GX, GW, PFR, vRDY = 112, 124, 136, 110
    uid = [0]
    def extras_load():
        u = uid[0]; uid[0] += 1
        a.c("extras: pre-format unit U = lw*256 + wg ; gate rows ; ready word")
        a(f"""
        s_lshl_b32 s{sU}, s{sLW}, 8
        s_add_u32 s{sU}, s{sU}, s2
        s_cmp_lt_u32 s{sU}, 384
        s_cselect_b32 s{rPF}, s{sW2}, s{sWO}
        s_cselect_b32 s{rPF+1}, s{sW2+1}, s{sWO+1}
        s_mov_b32 s{rPF+2}, {640*1280}
        s_cmov_b32 s{rPF+2}, {1536*1280}
        s_mov_b32 s{rPF+3}, 0x20000
        s_cbranch_scc0 {L('pfwo')}{u}
        s_lshr_b32 s{t0}, s{sU}, 2
        s_lshr_b32 s{t1}, s{t0}, 1
        s_lshl_b32 s{t1}, s{t1}, 5
        s_and_b32 s{t2}, s{t0}, 1
        s_lshl_b32 s{t2}, s{t2}, 3
        s_add_u32 s{sR0}, s{t1}, s{t2}
        s_mov_b32 s{sRJ}, 16
        s_mov_b32 s{sRH}, 4
        s_and_b32 s{t3}, s{sU}, 3
        s_branch {L('pfgo')}{u}
        {L('pfwo')}{u}:
        s_sub_u32 s{t0}, s{sU}, 384
        s_and_b32 s{t3}, s{t0}, 3
        s_lshr_b32 s{t0}, s{t0}, 2
        s_mul_i32 s{t1}, s{t0}, 20
        s_mul_i32 s{t2}, s{t0}, 80
        s_sub_u32 s{t2}, s{t2}, {32*80-16}
        s_cmp_lt_u32 s{t0}, 32
        s_cselect_b32 s{sR0}, s{t1}, s{t2}
        s_cselect_b32 s{sRJ}, 8, 20
        s_cselect_b32 s{sRH}, 4, 40
        s_add_u32 s{t0}, s{t0}, 96
        {L('pfgo')}{u}:
        s_mul_i32 s{t1}, s{t3}, {5*136}
        s_add_u32 s{t1}, s{t1}, s{t0}
        s_lshl_b32 s{sDst}, s{t1}, 10
        s_add_u32 s{sDst}, s{sDst}, {WF:#x}
        s_mul_i32 s{sR0}, s{sR0}, 1280
        s_mul_i32 s{t3}, s{t3}, 320
        s_add_u32 s{sR0}, s{sR0}, s{t3}
        s_cmp_lt_u32 s{sU}, 544
        s_cselect_b32 s{sR0}, s{sR0}, 0x10000000
        s_cselect_b32 s{sDst}, s{sDst}, 0x10000000
        s_mul_i32 s{t0}, s{sLW}, 5120
        s_add_u32 m0, s{t0}, {PFL}
        """)
        for i in range(5):
            a(f"""
            v_add_u32 v{T}, {64*i}, v0
            v_mul_u32_u24 v{T+1}, 3277, v{T}
            v_lshrrev_b32 v{T+1}, 16, v{T+1}
            v_mul_u32_u24 v{T+2}, 20, v{T+1}
            v_sub_u32 v{T+2}, v{T}, v{T+2}
            v_lshrrev_b32 v{T+3}, 3, v{T+1}
            v_mul_u32_u24 v{T+3}, s{sRJ}, v{T+3}
            v_bfe_u32 v{T+4}, v{T+1}, 2, 1
            v_mul_u32_u24 v{T+4}, s{sRH}, v{T+4}
            v_and_b32 v{T+1}, 3, v{T+1}
            v_add3_u32 v{T+1}, v{T+1}, v{T+3}, v{T+4}
            v_mul_u32_u24 v{T+1}, 1280, v{T+1}
            v_lshl_add_u32 v{T+5}, v{T+2}, 4, v{T+1}
            buffer_load_dwordx4 v{T+5}, s[{rPF}:{rPF+3}], s{sR0} offen lds
            s_add_u32 m0, m0, 1024
            """); vq.add("E")
        srd(a, rG, sGW, 1280)
        a(f"""
        s_lshl_b32 s{t0}, s{sRB}, 7
        s_lshl_b32 s{t1}, s{sCG}, 3
        s_add_u32 s{t0}, s{t0}, s{t1}
        s_lshl_b32 s{t1}, s{sLW}, 1
        s_add_u32 s{sRow}, s{t0}, s{t1}
        s_mul_i32 s{t0}, s{sRow}, 1280
        v_and_b32 v{T}, 31, v0
        v_lshrrev_b32 v{T+1}, 5, v0
        v_lshlrev_b32 v{T+2}, 4, v{T}
        v_lshlrev_b32 v{T+3}, 3, v{T}
        v_mul_u32_u24 v{T+4}, 1280, v{T+1}
        v_add_u32 v{T+5}, v{T+4}, v{T+2}
        v_add_u32 v{T+6}, v{T+4}, v{T+3}
        buffer_load_dwordx4 {vr(GX,4)}, v{T+5}, s[{rX}:{rX+3}], s{t0} offen
        buffer_load_dwordx4 {vr(GX+4,4)}, v{T+5}, s[{rX}:{rX+3}], s{t0} offen offset:512
        buffer_load_dwordx2 {vr(GX+8,2)}, v{T+6}, s[{rX}:{rX+3}], s{t0} offen offset:1024
        buffer_load_dwordx4 {vr(GW,4)}, v{T+2}, s[{rG}:{rG+3}], 0 offen
        buffer_load_dwordx4 {vr(GW+4,4)}, v{T+2}, s[{rG}:{rG+3}], 0 offen offset:512
        buffer_load_dwordx2 {vr(GW+8,2)}, v{T+3}, s[{rG}:{rG+3}], 0 offen offset:1024
        """)
        for i in range(6): vq.add("E")
    def extras_store():
        a.c("gate")
        a(f"s_waitcnt vmcnt({vq.after('E')})")
        a(f"v_mov_b32 v{T}, 0\nv_mov_b32 v{T+1}, 0")
        for i in range(10):
            a(f"v_dot2c_f32_bf16 v{T+(i&1)}, v{GX+i}, v{GW+i}")
        a(f"""
        v_lshrrev_b32 v{T+2}, 5, v0
        v_bfe_u32 v{T+3}, v0, 2, 2
        v_lshl_add_u32 v{T+3}, v{T+2}, 2, v{T+3}
        v_add_f32 v{T}, v{T}, v{T+1}
        v_mul_u32_u24 v{T+3}, 320, v{T+3}
        v_bfe_u32 v{T+4}, v0, 4, 1
        v_add_f32_dpp v{T}, v{T}, v{T} row_shr:1 row_mask:0xf bank_mask:0xf
        v_lshl_add_u32 v{T+3}, v{T+4}, 4, v{T+3}
        v_and_b32 v{T+4}, 1, v0
        v_add_f32_dpp v{T}, v{T}, v{T} row_shr:2 row_mask:0xf bank_mask:0xf
        v_lshl_add_u32 v{T+3}, v{T+4}, 5, v{T+3}
        v_bfe_u32 v{T+4}, v0, 1, 1
        v_add_f32_dpp v{T}, v{T}, v{T} row_shr:4 row_mask:0xf bank_mask:0xf
        v_lshl_add_u32 v{T+3}, v{T+4}, 3, v{T+3}
        s_mul_i32 s{t0}, s{sLW}, 5120
        s_add_u32 s{t0}, s{t0}, {PFL}
        v_add_f32_dpp v{T}, v{T}, v{T} row_shr:8 row_mask:0xf bank_mask:0xf
        v_add_u32 v{T+3}, s{t0}, v{T+3}
        v_lshlrev_b32 v{T+4}, 4, v0
        v_add_f32_dpp v{T}, v{T}, v{T} row_bcast:15 row_mask:0xa bank_mask:0xf
        """)
        for cb in range(5):
            for j in range(2):
                a(f"ds_read_b64_tr_b16 {vr(PFR+4*cb+2*j,2)}, v{T+3} offset:{cb*64+j*2560}")
        a(f"""
        v_mul_f32 v{T}, 0xbfb8aa3b, v{T}
        v_exp_f32 v{T}, v{T}
        v_lshlrev_b32 v{T+2}, 2, v{T+2}
        v_add_f32 v{T}, 1.0, v{T}
        v_rcp_f32 v{T}, v{T}
        s_lshl_b32 s{t0}, s{sRow}, 2
        s_add_u32 s{t0}, s{t0}, {GB:#x}
        s_mov_b32 exec_lo, 0x80000000
        s_mov_b32 exec_hi, 0x80000000
        buffer_store_dword v{T}, v{T+2}, {WSR}, s{t0} offen sc1
        s_mov_b64 exec, -1
        s_waitcnt lgkmcnt(0)
        """); vq.add("X")
        for cb in range(5):
            a(f"buffer_store_dwordx4 {vr(PFR+4*cb,4)}, v{T+4}, {WSR}, s{sDst} offen sc1"); vq.add("X")
            if cb < 4: a(f"s_add_u32 s{sDst}, s{sDst}, {WFB}")
    def wb(s):
        a(f"s_waitcnt vmcnt({vq.after(f'S{s}')})\ns_barrier")
    a(f"s_cmp_eq_u32 s{sCG}, 15\ns_cbranch_scc1 {L('spare_l')}")
    st.mark(1)
    issue(0); issue(1)
    late_setup()
    a("s_waitcnt lgkmcnt(0)")
    wb(0); st.mark(2)
    issue(2); issue(3)
    wb(1); issue(4)
    extras_load()
    wb(2); issue(5)
    for k in range(3, 10):
        wb(k)
        if k == 6: extras_store()
        if k == 7: a(f"s_sub_u32 s{sOX}, s{sOX}, 1280"); to_w1()
        issue(k + 3)
    a(f"s_branch {L('join_l')}")
    qsave = list(vq.q)
    a(f"{L('spare_l')}:")
    late_setup()
    extras_load(); extras_store()
    to_w1()
    issue(10); issue(11); issue(12)
    a("s_waitcnt lgkmcnt(0)")
    assert vq.q[-21:] == qsave[-21:]
    a(f"{L('join_l')}:")
    srd(a, rG, sDBG, 256)
    for k in range(10, 20):
        wb(k)
        if k == 10: st.mark(3)
        if k == 12:
            a(f"v_mov_b32 v{T}, 0\nbuffer_load_dword v{vRDY}, v{T}, s[{rG}:{rG+3}], 0 offen sc1"); vq.add("R")
        if k == 15:
            a.c("all stores of this workgroup so far are complete: add to the group's counter (8 replicas)")
            a(f"""
            s_waitcnt vmcnt({vq.after('R')})
            v_readfirstlane_b32 s{t0}, v{vRDY}
            s_mov_b32 s{t1}, 0
            s_cmp_lg_u32 s{t0}, 0
            s_cbranch_scc1 {L('rdy')}
            {L('rdy_spin')}:
            buffer_load_dword v{vRDY}, v{T}, s[{rG}:{rG+3}], 0 offen sc1
            s_add_u32 s{t1}, s{t1}, 1
            s_waitcnt vmcnt(0)
            v_readfirstlane_b32 s{t0}, v{vRDY}
            s_cmp_gt_u32 s{t1}, {SPIN}
            s_cbranch_scc1 {L('rdy')}
            s_cmp_eq_u32 s{t0}, 0
            s_cbranch_scc1 {L('rdy_spin')}
            {L('rdy')}:
            s_lshl_b32 s{t0}, s{sCG}, 11
            s_add_u32 s{t0}, s{t0}, {CNT:#x}
            s_cmp_eq_u32 s{sLW}, 0
            s_cselect_b32 s{t0}, s{t0}, 0x10000000
            v_lshlrev_b32 v{T+1}, 8, v0
            v_mov_b32 v{T+2}, 1
            s_mov_b64 exec, 0xff
            buffer_atomic_add v{T+2}, v{T+1}, {WSR}, s{t0} offen sc1
            s_mov_b64 exec, -1
            """); vq.add("A")
            st.mark(4)
        if k + 3 < 20: issue(k + 3)
        if k == 17: att_setup(T)
    a("s_barrier")
    st.mark(5)
    a.c("wait until every Q/K/V tile, the gate and the fragments are published")
    a(f"""
    s_mov_b32 s{t1}, 0
    v_mov_b32 v{T+3}, {LWORD}
    s_cmp_lg_u32 s{sLW}, 0
    s_cbranch_scc1 {L('lw_spin')}
    s_and_b32 s{t0}, s2, 7
    s_lshl_b32 s{t0}, s{t0}, 8
    s_add_u32 s{t0}, s{t0}, {CNT:#x}
    v_lshlrev_b32 v{T+1}, 11, v0
    s_mov_b64 exec, 0xffff
    {L('a_spin')}:
    buffer_load_dword v{T+2}, v{T+1}, {WSR}, s{t0} offen sc1
    s_add_u32 s{t1}, s{t1}, 1
    s_waitcnt vmcnt(0)
    v_cmp_gt_u32 vcc, 16, v{T+2}
    s_cmp_gt_u32 s{t1}, {SPIN}
    s_cbranch_scc1 {L('a_ok')}
    s_cbranch_vccnz {L('a_spin')}
    {L('a_ok')}:
    s_mov_b64 exec, -1
    v_mov_b32 v{T+2}, 1
    ds_write_b32 v{T+3}, v{T+2}
    s_branch {L('a_go')}
    {L('lw_spin')}:
    ds_read_b32 v{T+2}, v{T+3}
    s_add_u32 s{t1}, s{t1}, 1
    s_waitcnt lgkmcnt(0)
    v_readfirstlane_b32 s{t0}, v{T+2}
    s_cmp_gt_u32 s{t1}, {SPIN*16}
    s_cbranch_scc1 {L('a_go')}
    s_cmp_eq_u32 s{t0}, 0
    s_cbranch_scc1 {L('lw_spin')}
    {L('a_go')}:
    """)
    st.mark(6)
    a.c("first 16 key tiles (two pairs per wave) and the Q tiles of two waves")
    a(f"""
    s_mul_i32 s{t0}, s{sLW}, {4*TTS}
    s_mul_i32 m0, s{sLW}, 10240
    """)
    for p in range(2):
        for i in range(5):
            a(f"s_nop 0\nbuffer_load_dwordx4 v{VD+i}, {WSR}, s{t0} offen sc1 lds\ns_add_u32 m0, m0, 1024")
        if p == 0: a(f"s_add_u32 s{t0}, s{t0}, {2*TTS}")
    a(f"""
    s_lshl_b32 s{t0}, s{sQB}, 3
    s_lshl_b32 s{t1}, s{sLW}, 1
    s_add_u32 s{t0}, s{t0}, s{t1}
    s_mul_i32 s{t0}, s{t0}, {TTS}
    s_mul_i32 s{t1}, s{sHD}, 1280
    s_add_u32 s{t0}, s{t0}, s{t1}
    s_mul_i32 s{t1}, s{sLW}, 2560
    s_add_u32 m0, s{t1}, {QL}
    v_add_u32 v{T}, {1024 + TTS - 1280}, v{vL16}
    v_add_u32 v{T+1}, 1024, v{vL16}
    v_cmp_gt_u32 vcc, 16, v0
    v_add_u32 v{T+2}, 1024, v{T}
    buffer_load_dwordx4 v{vL16}, {WSR}, s{t0} offen sc1 lds
    s_add_u32 m0, m0, 1024
    v_cndmask_b32 v{T}, v{T}, v{T+1}, vcc
    buffer_load_dwordx4 v{T}, {WSR}, s{t0} offen sc1 lds
    s_add_u32 m0, m0, 1024
    s_mov_b64 exec, s[{sLO}:{sLO+1}]
    buffer_load_dwordx4 v{T+2}, {WSR}, s{t0} offen sc1 lds
    s_mov_b64 exec, -1
    s_waitcnt vmcnt(0)
    """)

    a(f"{L('att')}:")
    sTT, sOff, sFo, sFs1, sFs2, sFs3 = 56, 57, 58, 59, 3, 47
    a(f"""
    s_lshl_b32 s{sTT}, s{sQB}, 3
    s_add_u32 s{sTT}, s{sTT}, s{sWv}
    s_lshl_b32 s{t0}, s{sTT}, 7
    s_add_u32 s{t0}, s{t0}, {GB:#x}
    s_lshl_b32 s{t1}, s{sTD}, 7
    s_add_u32 s{t1}, s{t1}, {GB:#x}
    s_add_u32 s{sOff}, s{sWv}, 8
    s_mul_i32 m0, s{sOff}, 5120
    s_mul_i32 s{sOff}, s{sOff}, {2*TTS}
    s_barrier
    """)
    st.mark(7)
    vq = VQ()
    def rdK(t):
        return ([f"ds_read2st64_b64 {vr(K1,4)}, v{vK} offset0:{5*t} offset1:{5*t+1}"],
                [f"s_mov_b64 exec, s[{sLO}:{sLO+1}]", f"ds_read_b64 {vr(K2,2)}, v{vK} offset:{2560*t+1024}", "s_mov_b64 exec, -1"])
    def rdV(t, b):
        return [f"s_mov_b64 exec, s[{sVM}:{sVM+1}]",
                f"ds_read_b128 {vr(V[b],4)}, v{vV} offset:{2560*t}",
                f"ds_read_b128 {vr(V[b]+4,4)}, v{vV} offset:{2560*t+640}",
                "s_mov_b64 exec, -1"]
    M1 = lambda b: f"v_mfma_f32_32x32x16_bf16 {vr(S[b],16)}, {vr(K1,4)}, {vr(Q1,4)}, 0"
    M2 = lambda b: f"v_mfma_f32_32x32x8_bf16 {vr(S[b],16)}, {vr(K2,2)}, {vr(Q2,2)}, {vr(S[b],16)}"
    P = lambda b, s: f"v_smfmac_f32_32x32x32_bf16 {vr(O,16)}, {vr(V[b]+4*s,4)}, {vr(S[b]+8*s,8)}, v{IDX}"
    a(f"""
    ds_read2st64_b64 {vr(Q1,4)}, v{vT} offset0:0 offset1:1
    ds_read2st64_b64 {vr(K1,4)}, v{vK} offset0:0 offset1:1
    s_mov_b64 exec, s[{sLO}:{sLO+1}]
    ds_read_b64 {vr(Q2,2)}, v{vT} offset:1024
    ds_read_b64 {vr(K2,2)}, v{vK} offset:1024
    """)
    for x in rdV(0, 0): a(x)
    def dma1(i):
        vq.add("D")
        return [f"buffer_load_dwordx4 v{VD+i}, {WSR}, s{sOff} offen sc1 lds", "s_add_u32 m0, m0, 1024"]
    a(f"buffer_load_dword v{vGQ}, v{vGQ}, {WSR}, s{t0} offen sc1"); vq.add("G")
    a(f"buffer_load_dword v{vGD}, v{vGD}, {WSR}, s{t1} offen sc1"); vq.add("G")
    a("s_waitcnt lgkmcnt(2)")
    a(M1(0)); a(M2(0))
    for i in range(5):
        for x in dma1(i) + ["s_nop 0"]: a(x)
    a(f"s_add_u32 s{sOff}, s{sOff}, {16*TTS}\ns_add_u32 m0, m0, {40960-5120}")
    X = FR
    a(f"v_max3_f32 v{X}, v{S[0]}, v{S[0]+1}, v{S[0]+2}")
    a(f"v_max3_f32 v{X+1}, v{S[0]+3}, v{S[0]+4}, v{S[0]+5}")
    for i in range(6, 14, 4):
        a(f"v_max3_f32 v{X}, v{X}, v{S[0]+i}, v{S[0]+i+1}")
        a(f"v_max3_f32 v{X+1}, v{X+1}, v{S[0]+i+2}, v{S[0]+i+3}")
    a(f"""
    v_max3_f32 v{X}, v{X}, v{S[0]+14}, v{S[0]+15}
    v_max_f32 v{X}, v{X}, v{X+1}
    v_mov_b32 v{X+1}, v{X}
    s_not_b64 s[{t0}:{t0+1}], s[{sLO}:{sLO+1}]
    s_nop 0
    v_permlane32_swap_b32 v{X}, v{X+1}
    s_nop 0
    v_max_f32 v{X}, v{X}, v{X+1}
    s_mov_b64 exec, s[{t0}:{t0+1}]
    v_cvt_pk_bf16_f32 v{Q2}, -v{X}, 0
    s_mov_b64 exec, -1
    """)
    a(M1(0)); a("s_nop 0"); a(M2(0))
    k = rdK(1)
    for x in k[0] + k[1]: a(x)
    a.c("fragment stream: waves 0-3 column block w; waves 4-7 a quarter of column block 4")
    a(f"""
    s_min_u32 s{t0}, s{sWv}, 4
    s_mul_i32 s{t1}, s{sC}, 5
    s_add_u32 s{t0}, s{t0}, s{t1}
    s_mul_i32 s{sFo}, s{t0}, {WFB}
    s_add_u32 s{sFo}, s{sFo}, {WF:#x}
    s_sub_u32 s{t0}, s{sWv}, 4
    s_cmp_ge_u32 s{sWv}, 4
    s_cselect_b32 s{t0}, s{t0}, 0
    s_mul_i32 s{t1}, s{t0}, 24576
    s_add_u32 s{sFo}, s{sFo}, s{t1}
    s_mul_i32 s{t1}, s{t0}, 16384
    s_sub_u32 s{sFs1}, {(72+4)*1024}, s{t1}
    s_mul_i32 s{t1}, s{t0}, 6144
    s_sub_u32 s{sFs2}, {(24+4)*1024}, s{t1}
    s_cmp_ge_u32 s{sWv}, 4
    s_cselect_b32 s{sFs1}, s{sFs1}, 4096
    s_cselect_b32 s{sFs2}, s{sFs2}, 4096
    s_cselect_b32 s{sFs3}, 0x10000000, 0
    """)
    st.mark(8)
    def frag(i, reg):
        vq.add(f"F{i}")
        r = [f"buffer_load_dwordx4 {vr(reg,4)}, v{vL16}, {WSR}, s{sFo} offen offset:{(i%4)*1024} sc1"]
        if i % 4 == 3:
            r.append(f"s_add_u32 s{sFo}, s{sFo}, " + (f"s{sFs1}" if i == 23 else f"s{sFs2}" if i == 31 else "4096"))
        if i == 33: r.append(f"s_add_u32 s{sFo}, s{sFo}, s{sFs3}")
        return r
    ext = [[] for _ in range(64)]
    for i in range(5): ext[i].append(lambda i=i: dma1(i))
    def bar1():
        vq.add("A")
        return ["s_waitcnt vmcnt(0)", "s_barrier",
                f"s_lshl_b32 s{t0}, s{sRB}, 8", f"s_add_u32 s{t0}, s{t0}, {CNT_H:#x}",
                f"s_cmp_eq_u32 s{sWv}, 0", f"s_cselect_b32 s{t0}, s{t0}, 0x10000000",
                f"v_mov_b32 v{X}, 0", f"v_mov_b32 v{X+1}, 1", "s_mov_b64 exec, 1",
                f"buffer_atomic_add v{X+1}, v{X}, {WSR}, s{t0} offen sc1", "s_mov_b64 exec, -1",
                f"s_add_u32 s{sOff}, s{sOff}, {16*TTS}", f"s_add_u32 m0, m0, {40960-5120}"]
    ext[12].append(bar1)
    for i in range(5): ext[13+i].append(lambda i=i: dma1(i))
    TH, TB = 34, 42
    def hpoll():
        vq.add("H")
        return [f"s_lshr_b32 s{t0}, s{sTD}, 2", f"s_lshl_b32 s{t0}, s{t0}, 8", f"s_add_u32 s{t2}, s{t0}, {CNT_H:#x}",
                f"v_mov_b32 v{vT}, 0", f"buffer_load_dword v{vT}, v{vT}, {WSR}, s{t2} offen sc1"]
    def bar2():
        return [f"s_waitcnt vmcnt({vq.after('H')})", f"v_readfirstlane_b32 s{t0}, v{vT}",
                f"s_mul_i32 s{sOff}, s{sTD}, 98304", f"s_mul_i32 s{t1}, s{sWv}, 12288", f"s_mov_b32 m0, s{t1}",
                f"s_add_u32 s{sOff}, s{sOff}, s{t1}", f"s_add_u32 s{sOff}, s{sOff}, {HB:#x}",
                f"s_cmp_lt_u32 s{t0}, 16", f"s_cbranch_scc1 {L('h_spin')}", f"{L('h_ok')}:", "s_barrier"]
    def hdma():
        vq.add("HD")
        return [f"buffer_load_dwordx4 v{vL16}, {WSR}, s{sOff} offen sc1 lds", "s_add_u32 m0, m0, 1024", f"s_add_u32 s{sOff}, s{sOff}, 1024"]
    fi = 0
    for t in range(18, 62):
        if t == TH: ext[t].append(hpoll)
        if t == TB: ext[t].append(bar2)
        if TB < t <= TB + 12: ext[t].append(hdma)
        nf = (2 if t % 4 == 0 else 1) if t < TB else (0 if t <= TB + 12 else 2)
        for _ in range(nf):
            if fi < NFR:
                ext[t].append(lambda i=fi: frag(i, FR + 4*i)); fi += 1
    assert fi == NFR, fi
    for t in range(64):
        b = t & 1; tl = t % 16
        e = [f"v_exp_f32 v{S[b]+i}, v{S[b]+i}" for i in range(16)]
        k0, k1 = rdK(tl + 2) if t < 62 else ([], [])
        v = rdV(tl + 1, b ^ 1) if t < 63 else []
        mm = t < 63
        w1 = ["s_waitcnt lgkmcnt(2)"] if mm else []
        w2 = ["s_waitcnt lgkmcnt(4)"] if t < 62 else ["s_waitcnt lgkmcnt(2)"] if t == 62 else ["s_waitcnt lgkmcnt(0)"]
        seq = ["s_setprio 1"] + e[0:2] + [P(b ^ 1, 1)] + e[2:3] + v + e[3:6] + w1 + ([M1(b ^ 1)] if mm else []) + e[6:10] + ([M2(b ^ 1)] if mm else []) \
            + ["s_setprio 0"] + k0 + e[10:11] + k1 + e[11:14] + w2 + [P(b, 0)] + e[14:16]
        x = []
        for f in ext[t]: x += f()
        if tl == 15 and t < 63: x += [f"v_add_u32 v{vK}, 40960, v{vK}", f"v_add_u32 v{vV}, 40960, v{vV}"]
        if len(x) < 2: x += ["s_nop 0"] * (2 - len(x))
        for y in seq + x: a(y)
    st.mark(9)
    a(P(1, 1))
    Y = S[0]
    a(f"""
    v_and_b32 v{Y}, 31, v0
    v_lshrrev_b32 v{Y+1}, 1, v{Y}
    v_and_b32 v{Y+2}, 1, v{Y}
    v_lshl_add_u32 v{Y+1}, v{Y+2}, 4, v{Y+1}
    v_lshlrev_b32 v{Y+3}, 3, v{Y+1}
    v_lshlrev_b32 v{Y+1}, 4, v{Y+1}
    v_lshrrev_b32 v{Y+2}, 5, v0
    v_lshl_add_u32 v{Y+2}, v{Y+2}, 9, v{Y+1}
    s_mul_i32 s{t0}, s{sTT}, {TTS}
    s_add_u32 s{t0}, s{t0}, {OB:#x}
    s_lshl_b32 s{t1}, s{sHD}, 10
    s_add_u32 s{t1}, s{t1}, s{t0}
    s_lshr_b32 s{t2}, s{sHD}, 2
    s_lshl_b32 s{t2}, s{t2}, 10
    s_add_u32 s{t0}, s{t0}, s{t2}
    s_and_b32 s{t2}, s{sHD}, 1
    s_lshl_b32 s{t2}, s{t2}, 9
    s_add_u32 s{t0}, s{t0}, s{t2}
    s_and_b32 s{t2}, s{sHD}, 2
    s_lshl_b32 s{t2}, s{t2}, 7
    s_add_u32 s{t0}, s{t0}, s{t2}
    s_add_u32 s{t0}, s{t0}, 32768
    v_cndmask_b32 v{Y+4}, v{O+8}, v{O+12}, s[{sLO}:{sLO+1}]
    v_cmp_nlt_f32 vcc, 0x5d800000, v{Y+4}
    v_cmp_lt_f32 s[{t2}:{t2+1}], 0, v{Y+4}
    v_rcp_f32 v{Y+5}, v{Y+4}
    s_and_b64 vcc, vcc, s[{t2}:{t2+1}]
    s_cmp_eq_u64 vcc, -1
    s_cbranch_scc0 {L('slow')}
    {L('store')}:
    v_mul_f32 v{Y+5}, v{Y+5}, v{vGQ}
    """)
    for i in range(12): a(f"v_mul_f32 v{O+i}, v{O+i}, v{Y+5}")
    for i in range(6): a(f"v_cvt_pk_bf16_f32 v{S[1]+i}, v{O+2*i}, v{O+2*i+1}")
    a(f"""
    buffer_store_dwordx4 {vr(S[1],4)}, v{Y+2}, {WSR}, s{t1} offen sc1
    s_mov_b64 exec, s[{sLO}:{sLO+1}]
    buffer_store_dwordx2 {vr(S[1]+4,2)}, v{Y+3}, {WSR}, s{t0} offen sc1
    s_mov_b64 exec, -1
    s_waitcnt vmcnt(2)
    s_barrier
    """)
    st.mark(10)
    AC = 8; BF = 24
    vB0, vB1, vOr, vOne = 2, 3, 4, 5
    sSig = 56
    a(f"""
    v_mov_b32 v{vB0}, v{vL16}
    v_add_u32 v{vB1}, 65536, v{vL16}
    v_lshlrev_b32 v{vOr}, 3, v0
    v_add_u32 v{vOr}, {OL}, v{vOr}
    v_mov_b32 v{vOne}, 1
    v_mov_b32 v{vT}, 0
    v_sub_f32 v{vGD}, 1.0, v{vGD}
    s_lshl_b32 s{sSig}, s{sTT}, 8
    s_add_u32 s{sSig}, s{sSig}, {CNT_O:#x}
    """)
    srd(a, rX, sOUT, 2048*1280)
    a(f"s_cmp_ge_u32 s{sWv}, 4\ns_cbranch_scc1 {L('small')}")
    def signal(w):
        return [f"s_waitcnt vmcnt({w})", "s_mov_b64 exec, 1", f"buffer_atomic_add v{vOne}, v{vT}, {WSR}, s{sSig} offen sc1", "s_mov_b64 exec, -1"]
    def mf(fr, bf, first):
        return f"v_mfma_f32_32x32x16_bf16 {vr(AC,16)}, {vr(fr,4)}, {vr(bf,4)}, {'0' if first else vr(AC,16)}"
    def rdH(ks, r):
        return f"ds_read_b128 {vr(r,4)}, v{vB0 if ks < 64 else vB1} offset:{(ks%64)*1024}"
    def rdO(ks, r):
        if ks < 32: return f"ds_read_b128 {vr(r,4)}, v{vB1} offset:{OL-65536+ks*1024}" if OL-65536+ks*1024 < 65536 else f"ds_read_b128 {vr(r,4)}, v{vB0} offset:{ks*1024-8192}"
        return f"ds_read2st64_b64 {vr(r,4)}, v{vOr} offset0:{64+2*(ks-32)} offset1:{65+2*(ks-32)}"
    def scale():
        a("s_nop 7\ns_nop 3")
        for i in range(16): a(f"v_mul_f32 v{AC+i}, v{AC+i}, v{vGD}")
    vq = VQ(); vq.add("ST"); vq.add("ST")
    NX = 11
    ring = [FR + 4*i for i in range(NFR)] + [40 + 4*i for i in range(NX)]
    NR = NFR + NX
    for ks in range(3): a(rdH(ks, BF + 4*ks))
    for i in range(NFR, NR):
        for x in frag(i, ring[i]): a(x)
    SIGAT, BRAT = 30, 12
    for i in range(136):
        if i == 96:
            scale()
            a(f"v_add_u32 v{vB0}, {OL+8192}, v{vL16}")
            st.mark(11)
            a("s_barrier")
            st.mark(12)
            for ks in range(3): a(rdO(ks, BF + 4*ks))
        last = 95 if i < 96 else 135
        if i + 3 <= last: a(rdH(i+3, BF + 4*((i+3) % 4)) if i < 96 else rdO(i+3-96, BF + 4*((i+3) % 4)))
        wl = min(3, last - i)
        a(f"s_waitcnt lgkmcnt({wl})" + (f" vmcnt({vq.after(f'F{i}')})" if i >= NFR else ""))
        a(mf(ring[i % NR], BF + 4*(i % 4), i == 0))
        if i + NR < 136:
            for x in frag(i + NR, ring[i % NR]): a(x)
        if i == SIGAT:
            for x in signal(vq.after("ST")): a(x)
            vq.add("A")
        if i == 96 + BRAT: a("s_barrier")
    a(f"""
    v_and_b32 v24, 31, v0
    v_mul_u32_u24 v24, 1280, v24
    v_lshrrev_b32 v25, 5, v0
    v_lshl_add_u32 v24, v25, 5, v24
    s_mul_i32 s{t0}, s{sTD}, {32*1280}
    s_mul_i32 s{t1}, s{sC}, 320
    s_add_u32 s{t0}, s{t0}, s{t1}
    s_lshl_b32 s{t1}, s{sWv}, 6
    s_add_u32 s{t0}, s{t0}, s{t1}
    s_nop 3
    """)
    for i in range(8): a(f"v_cvt_pk_bf16_f32 v{28+i}, v{AC+2*i}, v{AC+2*i+1}")
    a(f"""
    buffer_store_dwordx4 v[28:31], v24, s[{rX}:{rX+3}], s{t0} offen
    buffer_store_dwordx4 v[32:35], v24, s[{rX}:{rX+3}], s{t0} offen offset:16
    """)
    st.mark(13); st.real(15); st.flush(rWS, sWv)
    a("s_endpgm")
    a(f"""
    {L('small')}:
    s_sub_u32 s{t3}, s{sWv}, 4
    s_setprio 1
    s_mul_i32 s{t0}, s{t3}, 24576
    v_add_u32 v{vB0}, s{t0}, v{vL16}
    """)
    for ks in range(3): a(rdH(ks, BF + 4*ks))
    for i in range(24):
        if i + 3 < 24: a(rdH(i+3, BF + 4*((i+3) % 4)))
        a(f"s_waitcnt lgkmcnt({min(3, 23-i)})")
        a(mf(FR + 4*i, BF + 4*(i % 4), i == 0))
    for x in signal(0): a(x)
    scale()
    a(f"""
    s_lshl_b32 s{t0}, s{sTD}, 8
    s_add_u32 s{t0}, s{t0}, {CNT_O:#x}
    s_mov_b32 s{t1}, 0
    {L('o_spin')}:
    buffer_load_dword v40, v{vT}, {WSR}, s{t0} offen sc1
    s_add_u32 s{t1}, s{t1}, 1
    s_waitcnt vmcnt(0)
    v_readfirstlane_b32 s{t2}, v40
    s_cmp_gt_u32 s{t1}, {SPIN}
    s_cbranch_scc1 {L('o_ok')}
    s_cmp_lt_u32 s{t2}, 32
    s_cbranch_scc1 {L('o_spin')}
    {L('o_ok')}:
    """)
    st.mark(11)
    a(f"""
    s_mul_i32 s{t0}, s{sTD}, {TTS}
    s_mul_i32 s{t1}, s{t3}, 10240
    s_add_u32 s{t0}, s{t0}, s{t1}
    s_add_u32 s{t0}, s{t0}, {OB:#x}
    s_add_u32 m0, s{t1}, {OL}
    """)
    for i in range(10):
        a(f"s_nop 0\nbuffer_load_dwordx4 v{vL16}, {WSR}, s{t0} offen sc1 lds")
        if i < 9: a(f"s_add_u32 s{t0}, s{t0}, 1024\ns_add_u32 m0, m0, 1024")
    a(f"""
    s_lshl_b32 s{t0}, s{t3}, 13
    s_add_u32 s{t0}, s{t0}, {OL}
    v_add_u32 v{vB0}, s{t0}, v{vL16}
    s_lshl_b32 s{t0}, s{t3}, 11
    v_add_u32 v{vOr}, s{t0}, v{vOr}
    s_lshl_b32 s{t0}, s{t3}, 12
    s_add_u32 s{t0}, s{t0}, {PARTL}
    v_add_u32 v{vB1}, s{t0}, v{vL16}
    s_waitcnt vmcnt(0)
    s_barrier
    """)
    st.mark(12)
    for i in range(10):
        r = 40 + 4*i
        a(f"ds_read_b128 {vr(r,4)}, v{vB0} offset:{i*1024}" if i < 8 else f"ds_read2st64_b64 {vr(r,4)}, v{vOr} offset0:{64+2*(i-8)} offset1:{65+2*(i-8)}")
    for i in range(10):
        a(f"s_waitcnt lgkmcnt({9-i})")
        a(mf(FR + 4*(24+i), 40 + 4*i, False))
    a(f"""
    s_lshl_b32 s{t0}, s{t3}, 10
    s_add_u32 s{t0}, s{t0}, {PARTL}
    v_add_u32 v{vB0}, s{t0}, v{vL16}
    v_and_b32 v24, 31, v0
    v_mul_u32_u24 v24, 1280, v24
    v_lshrrev_b32 v25, 5, v0
    v_lshl_add_u32 v24, v25, 5, v24
    s_mul_i32 s{t0}, s{sTD}, {32*1280}
    s_mul_i32 s{t1}, s{sC}, 320
    s_add_u32 s{t0}, s{t0}, s{t1}
    s_lshl_b32 s{t1}, s{t3}, 3
    s_add_u32 s{t0}, s{t0}, s{t1}
    s_add_u32 s{t0}, s{t0}, 256
    """)
    for q in range(4): a(f"ds_write_b128 v{vB1}, {vr(AC+4*q,4)} offset:{q*1024}")
    a("s_waitcnt lgkmcnt(0)\ns_barrier")
    for q in range(4): a(f"ds_read_b128 {vr(40+4*q,4)}, v{vB0} offset:{q*4096}")
    a("s_waitcnt lgkmcnt(2)")
    for r in range(4): a(f"v_add_f32 v{40+r}, v{40+r}, v{44+r}")
    a("s_waitcnt lgkmcnt(0)")
    for r in range(4): a(f"v_add_f32 v{48+r}, v{48+r}, v{52+r}")
    for r in range(4): a(f"v_add_f32 v{40+r}, v{40+r}, v{48+r}")
    a(f"""
    v_cvt_pk_bf16_f32 v40, v40, v41
    v_cvt_pk_bf16_f32 v41, v42, v43
    buffer_store_dwordx2 v[40:41], v24, s[{rX}:{rX+3}], s{t0} offen
    """)
    st.mark(13); st.real(15); st.flush(rWS, sWv)
    a(f"{L('end')}:\ns_endpgm")
    a(f"""
    {L('h_spin')}:
    s_mov_b32 s{t1}, 0
    {L('h_spin2')}:
    v_mov_b32 v{vT}, 0
    s_add_u32 s{t1}, s{t1}, 1
    buffer_load_dword v{vT}, v{vT}, {WSR}, s{t2} offen sc1
    s_waitcnt vmcnt(0)
    v_readfirstlane_b32 s{t0}, v{vT}
    s_cmp_gt_u32 s{t1}, {SPIN}
    s_cbranch_scc1 {L('h_ok')}
    s_cmp_lt_u32 s{t0}, 16
    s_cbranch_scc1 {L('h_spin2')}
    s_branch {L('h_ok')}
    """)
    a(f"{L('slow')}:")
    sKo, sVo, sI = 96, 97, 98
    Z = S[1]
    vM, vA, vKg, vVg, vVh, vKr, vX_, vX2 = Z, Z+1, Z+2, Z+3, Z+4, Z+5, Z+6, Z+7
    W = Z + 8
    a(f"""
    v_mov_b32 v{W}, v{Y+2}
    v_mov_b32 v{W+1}, v{Y+3}
    s_mul_i32 s{sKo}, s{sHD}, 1280
    s_add_u32 s{sKo}, s{sKo}, {KB:#x}
    s_mul_i32 s{sVo}, s{sHD}, 320
    s_add_u32 s{sVo}, s{sVo}, {VB:#x}
    v_subrev_u32 v{vKg}, {3*40960}, v{vK}
    v_lshrrev_b32 v{vVh}, 5, v0
    v_mul_u32_u24 v{vVh}, 10240, v{vVh}
    v_lshl_add_u32 v{vVg}, v{Y}, 4, v{vVh}
    v_add_u32 v{vVh}, 20480, v{vVg}
    v_and_b32 v{vKr}, 0xff, v{vKg}
    v_mov_b32 v{vM}, 0xff800000
    s_mov_b32 s{sI}, 0
    s_not_b64 exec, s[{sLO}:{sLO+1}]
    v_mov_b32 v{Q2}, 0
    s_mov_b64 exec, -1
    """)
    for i in range(16): a(f"v_mov_b32 v{O+i}, 0")
    a(f"""
    {L('sloop')}:
    buffer_load_dwordx2 {vr(K1,2)}, v{vKg}, {WSR}, s{sKo} offen sc1
    buffer_load_dwordx2 {vr(K1+2,2)}, v{vKg}, {WSR}, s{sKo} offen offset:512 sc1
    buffer_load_dwordx2 {vr(K2,2)}, v{vKr}, {WSR}, s{sKo} offen offset:1024 sc1
    s_mov_b64 exec, s[{sVM}:{sVM+1}]
    buffer_load_dwordx4 {vr(V[0],4)}, v{vVg}, {WSR}, s{sVo} offen sc1
    buffer_load_dwordx4 {vr(V[0]+4,4)}, v{vVh}, {WSR}, s{sVo} offen sc1
    s_mov_b64 exec, -1
    s_add_u32 s{sKo}, s{sKo}, {TTS}
    s_add_u32 s{sVo}, s{sVo}, {TTS}
    s_waitcnt vmcnt(0)
    """)
    a(M1(0)); a(M2(0))
    a("s_nop 11")
    a(f"v_max3_f32 v{vX_}, v{S[0]}, v{S[0]+1}, v{vM}")
    for i in range(2, 16, 2):
        a(f"v_max3_f32 v{vX_}, v{vX_}, v{S[0]+i}, v{S[0]+i+1}")
    a(f"""
    v_mov_b32 v{vX2}, v{vX_}
    s_nop 1
    v_permlane32_swap_b32 v{vX_}, v{vX2}
    s_nop 0
    v_max_f32 v{vX_}, v{vX_}, v{vX2}
    v_sub_f32 v{vA}, v{vM}, v{vX_}
    v_exp_f32 v{vA}, v{vA}
    v_mov_b32 v{vM}, v{vX_}
    """)
    for i in range(16):
        a(f"v_sub_f32 v{S[0]+i}, v{S[0]+i}, v{vX_}")
        a(f"v_mul_f32 v{O+i}, v{O+i}, v{vA}")
    for i in range(16): a(f"v_exp_f32 v{S[0]+i}, v{S[0]+i}")
    a("s_nop 1")
    a(P(0, 0)); a(P(0, 1))
    a(f"""
    s_add_u32 s{sI}, s{sI}, 1
    s_cmp_lg_u32 s{sI}, 64
    s_nop 11
    s_cbranch_scc1 {L('sloop')}
    v_cndmask_b32 v{Y+4}, v{O+8}, v{O+12}, s[{sLO}:{sLO+1}]
    v_mov_b32 v{Y+2}, v{W}
    v_mov_b32 v{Y+3}, v{W+1}
    v_rcp_f32 v{Y+5}, v{Y+4}
    s_branch {L('store')}
    """)
    return khead(name) + a.text()
```

```python
import sys, os
sys.path.insert(0, os.path.dirname(os.path.abspath(__file__)))
from asm import *
import fk
NAME = "gated_mix__mha_block__dense_activation_relu__prompt"
def build():
    kn = NAME + "_kernel"
    s = "; generated by gen/buildf.py (hand-written generator): one persistent kernel, GEMM1 -> attention -> output GEMMs\n"
    s += f"; @launch grid=(256,1,1) block=(512,1,1) lds={fk.F_LDS}\n"
    s += '.amdgcn_target "amdgcn-amd-amdhsa--gfx950"\n' + fk.gen(kn) + kdesc(kn, 256, 102)
    return s
if __name__ == "__main__":
    out = sys.argv[1] if len(sys.argv) > 1 else f"cdna_kernels/{NAME}.s"
    open(out, "w").write(build())
```
